```python
import torch

def _softmax(x, axis=-1):
    return torch.softmax(x, dim=axis)
def _gelu(x):
    return torch.nn.functional.gelu(x, approximate="tanh")
def _silu(x):
    return torch.nn.functional.silu(x)
def _sigmoid(x):
    return torch.sigmoid(x)
def _layernorm(x, axis=-1, eps=1e-5):
    m = x.mean(dim=axis, keepdim=True)
    v = x.var(dim=axis, keepdim=True, unbiased=False)
    return (x - m) / torch.sqrt(v + eps)
def _scatter_add(tgt, idx, src, axis=0):
    return tgt.clone().index_add_(axis, idx, src)
def _segment_sum(src, seg, n):
    out = torch.zeros((n,) + src.shape[1:], dtype=src.dtype)
    return out.index_add_(0, seg, src)
def _pad(x, pw):
    flat = tuple(v for pair in reversed(pw) for v in pair)
    return torch.nn.functional.pad(x, flat)

kernel_name = 'standalone__gqa_softmax__near_ridge'

def setup_inputs():

    _w = (lambda a: (lambda t: t.to(torch.bfloat16) if t.is_floating_point() else t)(torch.as_tensor(a)))
    B, Hq, Hkv, Sq, Sk, D = 8, 16, 8, 192, 1024, 256
    return {
        "q": _w((lambda *s: torch.randn(*s, dtype=torch.bfloat16) * 0.8)(B, Hq, Sq, D)),
        "k": _w((lambda *s: torch.randn(*s, dtype=torch.bfloat16) * 0.8)(B, Hkv, Sk, D)),
        "v": _w((lambda *s: torch.randn(*s, dtype=torch.bfloat16) * 0.05)(B, Hkv, Sk, D)),
    }

def reference(q, k, v):
    B, Hq, Sq, D = q.shape
    Hkv = k.shape[1]
    rep = Hq // Hkv
    k = (lambda x, n, axis: torch.repeat_interleave(x, n, dim=axis))(k, rep, axis=1)
    v = (lambda x, n, axis: torch.repeat_interleave(x, n, dim=axis))(v, rep, axis=1)
    scale = D ** -0.5
    scores = torch.einsum("bhqd,bhkd->bhqk", q, k) * scale
    p = _softmax(scores, axis=-1)
    return torch.einsum("bhqk,bhkd->bhqd", p, v)
```

```python
NAME = "standalone__gqa_softmax__near_ridge_kernel"
def header(grid, block, lds, comments=()):
    L = list(comments)
    L.append(f"; @launch grid=({grid},1,1) block=({block},1,1) lds={lds}")
    L += ['.amdgcn_target "amdgcn-amd-amdhsa--gfx950"', ".text", f".globl {NAME}", ".p2align 8",
          f".type {NAME},@function", f"{NAME}:"]
    return L
def footer(nvgpr, accum, nsgpr=102):
    return ['.section .rodata,"a"', ".p2align 6", f".amdhsa_kernel {NAME}",
            f"  .amdhsa_next_free_vgpr {nvgpr}", f"  .amdhsa_next_free_sgpr {nsgpr}", f"  .amdhsa_accum_offset {accum}",
            "  .amdhsa_group_segment_fixed_size 0", "  .amdhsa_kernarg_size 48", "  .amdhsa_user_sgpr_count 2",
            "  .amdhsa_user_sgpr_kernarg_segment_ptr 1", "  .amdhsa_system_sgpr_workgroup_id_x 1", ".end_amdhsa_kernel"]
def srd(d, b, nbytes):
    return [f"s_mov_b32 s{d}, s{b}", f"s_mov_b32 s{d+1}, s{b+1}", f"s_mov_b32 s{d+2}, {nbytes}", f"s_mov_b32 s{d+3}, 0x20000"]
```

```python
import re

class Op:
    __slots__ = ("text", "kind", "tag", "needs", "cost", "wait", "drain")
    def __init__(self, text, kind=None, tag=None, needs=(), cost=None, drain=None):
        self.text = text
        self.kind = kind or classify(text)
        self.tag = tag
        self.needs = list(needs)
        self.cost = cost if cost is not None else COST.get(self.kind, 4)
        self.wait = None
        self.drain = drain

COST = {"mfma": 8, "valu": 4, "trans": 8, "salu": 4, "dsr": 4, "dsw": 13, "dma": 13, "vld": 13, "vst": 13,
        "bar": 4, "wait": 4, "label": 0, "branch": 4, "nop": 4, "smem": 4, "dir": 0}

TRANS = ("v_exp_f32", "v_log_f32", "v_rcp_f32", "v_rsq_f32", "v_sqrt_f32")
def classify(t):
    m = t.split()[0]
    if m.endswith(":"): return "label"
    if m.startswith("."): return "dir"
    if m.startswith(";"): return "dir"
    if m.startswith("v_mfma"): return "mfma"
    if m in TRANS: return "trans"
    if m.startswith("v_"): return "valu"
    if m.startswith("ds_read"): return "dsr"
    if m.startswith("ds_"): return "dsw"
    if m.startswith("buffer_load") or m.startswith("global_load"):
        return "dma" if t.rstrip().endswith("lds") else "vld"
    if m.startswith("buffer_store") or m.startswith("global_store"): return "vst"
    if m == "s_barrier": return "bar"
    if m == "s_waitcnt": return "wait"
    if m == "s_nop": return "nop"
    if m.startswith("s_cbranch") or m == "s_branch": return "branch"
    if m.startswith("s_load") or m.startswith("s_mem"): return "smem"
    if m.startswith("s_"): return "salu"
    raise ValueError(t)

def W(vm=None, lgkm=None):
    parts = []
    if vm is not None: parts.append(f"vmcnt({vm})")
    if lgkm is not None: parts.append(f"lgkmcnt({lgkm})")
    return Op("s_waitcnt " + " ".join(parts), "wait", drain=dict(vm=vm, lgkm=lgkm))

def dyn(tag, t):
    return (tag[0], tag[1] + t) + tuple(tag[2:])

VMK = ("dma", "vld", "vst")
LGK = ("dsr", "dsw")

def derive_waits(trace):
    req = {}
    vmq, lgq = [], []
    pos = {}
    for op, t in trace:
        if op.needs:
            vm = lg = None
            for n in op.needs:
                d = dyn(n, t)
                if d not in pos:
                    raise KeyError(f"need {d} never produced before: {op.text}")
                q, i = pos[d]
                if q == "vm":
                    c = len(vmq) - 1 - i
                    vm = c if vm is None else min(vm, c)
                else:
                    c = len(lgq) - 1 - i
                    lg = c if lg is None else min(lg, c)
            r = req.get(id(op), (None, None))
            def mn(a, b):
                return b if a is None else (a if b is None else min(a, b))
            req[id(op)] = (mn(r[0], vm), mn(r[1], lg))
        if op.kind in VMK:
            vmq.append(op)
            if op.tag: pos[dyn(op.tag, t)] = ("vm", len(vmq) - 1)
        elif op.kind in LGK:
            lgq.append(op)
            if op.tag: pos[dyn(op.tag, t)] = ("lg", len(lgq) - 1)
    statics = []
    seen = set()
    for op, t in trace:
        if id(op) in req and id(op) not in seen:
            seen.add(id(op)); statics.append(op)
            vm, lg = req[id(op)]
            if vm is not None: vm = min(vm, 63)
            if lg is not None: lg = min(lg, 15)
            op.wait = [vm, lg]
    def ok():
        nv = nl = 0; dv = dl = 0
        pos = {}
        for op, t in trace:
            w = op.wait
            if op.drain: w = [op.drain.get("vm"), op.drain.get("lgkm")]
            if w:
                if w[0] is not None: dv = max(dv, nv - w[0])
                if w[1] is not None: dl = max(dl, nl - w[1])
            for n in op.needs:
                q, i = pos[dyn(n, t)]
                if q == "vm" and i >= dv: return False
                if q == "lg" and i >= dl: return False
            if op.kind in VMK:
                if op.tag: pos[dyn(op.tag, t)] = ("vm", nv)
                nv += 1
            elif op.kind in LGK:
                if op.tag: pos[dyn(op.tag, t)] = ("lg", nl)
                nl += 1
        return True
    assert ok()
    for op in statics:
        for k in (0, 1):
            if op.wait[k] is not None:
                s = op.wait[k]; op.wait[k] = None
                if not ok(): op.wait[k] = s
    for op in statics:
        if op.wait == [None, None]: op.wait = None

def emit(ops):
    out = []
    for op in ops:
        if op.wait:
            parts = []
            if op.wait[0] is not None: parts.append(f"vmcnt({op.wait[0]})")
            if op.wait[1] is not None: parts.append(f"lgkmcnt({op.wait[1]})")
            out.append("    s_waitcnt " + " ".join(parts))
        out.append(("" if op.kind in ("label", "dir") else "    ") + op.text)
    return out

REG = re.compile(r"\b([vas])(?:(\d+)|\[(\d+):(\d+)\])")
def regs(s):
    out = set()
    for m in REG.finditer(s):
        f = m.group(1)
        if m.group(2) is not None: out.add((f, int(m.group(2))))
        else: out.update((f, i) for i in range(int(m.group(3)), int(m.group(4)) + 1))
    if re.search(r"\bvcc\b", s): out.add(("s", "vcc"))
    if re.search(r"\bm0\b", s): out.add(("s", "m0"))
    if re.search(r"\bexec\b", s): out.add(("s", "exec"))
    return out

def rw(op):
    t = op.text.split(";")[0].strip()
    parts = t.split(None, 1)
    mn = parts[0]
    ops = [x.strip() for x in parts[1].split(",")] if len(parts) > 1 else []
    k = op.kind
    R, Wr, C = set(), set(), set()
    if k == "mfma":
        Wr = regs(ops[0]); R = regs(ops[1]) | regs(ops[2]); C = regs(ops[3])
    elif k in ("valu", "trans"):
        Wr = regs(ops[0])
        for o in ops[1:]: R |= regs(o)
        if mn.startswith("v_fmac") or mn.startswith("v_permlane") or mn.startswith("v_swap"): R |= regs(ops[0])
        if mn.startswith("v_permlane") or mn.startswith("v_swap"): Wr |= regs(ops[1])
    elif k == "dsr":
        Wr = regs(ops[0]); R = regs(ops[1])
    elif k == "dsw":
        for o in ops: R |= regs(o)
    elif k == "dma":
        for o in ops: R |= regs(o)
        R.add(("s", "m0"))
    elif k == "vld":
        Wr = regs(ops[0])
        for o in ops[1:]: R |= regs(o)
    elif k == "vst":
        for o in ops: R |= regs(o)
    elif k in ("salu", "smem"):
        if mn.startswith("s_cmp") or mn in ("s_setprio", "s_endpgm", "s_sleep"):
            for o in ops: R |= regs(o)
        elif ops:
            Wr = regs(ops[0])
            for o in ops[1:]: R |= regs(o)
            if "saveexec" in mn: Wr.add(("s", "exec"))
    elif k == "branch":
        if "vcc" in mn: R.add(("s", "vcc"))
    return mn, R, Wr, C

def check_hazards(seq):
    lin = []
    for op in seq:
        if op.kind in ("label", "dir"): continue
        if op.wait: lin.append(Op("s_waitcnt x", "wait"))
        lin.append(op)
    info = [rw(op) for op in lin]
    slots = [(int(op.text.split()[1]) + 1 if op.kind == "nop" else 1) for op in lin]
    errs = []
    for j, op in enumerate(lin):
        mn, R, Wr, C = info[j]
        dist = 0
        for i in range(j - 1, max(-1, j - 24), -1):
            p = lin[i]; pm, pR, pW, pC = info[i]
            need = 0
            isval = op.kind in ("valu", "trans")
            if p.kind == "mfma":
                passes8 = "32x32" in pm
                if isval and (pW & (R | Wr)): need = 12 if passes8 else 8
                if op.kind in ("dsw", "vst", "dma", "dsr", "vld") and (pW & (R | Wr)): need = 12 if passes8 else 8
                if op.kind == "mfma":
                    if pW & R: need = 12 if passes8 else 8
                    if (pW & C) and pW != C: need = max(need, 10 if passes8 else 6)
                    if (pW & Wr) and pW != C: need = max(need, 10 if passes8 else 6)
                if isval and (pC & Wr): need = max(need, 7 if passes8 else 3)
            if p.kind in ("valu", "trans"):
                if op.kind == "mfma" and (pW & (R | C)): need = max(need, 2)
                if p.kind == "trans" and op.kind == "valu" and (pW & R): need = max(need, 1)
                if mn.startswith("v_permlane") and (pW & R): need = max(need, 2)
                if mn.startswith("v_readfirstlane") or mn.startswith("v_readlane"):
                    if pW & R: need = max(need, 1)
                sw = {x for x in pW if x[0] == "s"}
                if sw:
                    if isval and (sw & R): need = max(need, 2)
                    if op.kind in ("dma", "vld", "vst") and (sw & R): need = max(need, 5)
            if p.kind == "salu" and ("s", "m0") in pW and op.kind == "dma": need = max(need, 1)
            if p.kind == "vst" and ("x4" in pm or "x3" in pm) and isval:
                data = regs(p.text.split(None, 1)[1].split(",")[0])
                if data & Wr: need = max(need, 2)
            if need > dist:
                errs.append(f"hazard: '{p.text}' -> '{op.text}' dist {dist} need {need}")
            dist += slots[i]
    return errs
```

```python
import sys, math, struct
from fw import *
from asmlib import header, footer, NAME

def f2u(x): return struct.unpack("<I", struct.pack("<f", x))[0]

class Cfg:
    kpol = ""
    vpol = ""
    qpol = ""
    opol = ""
    stamps = False
    budget = 22
    thresh = 65536.0

KW = 16896; KB = 0
VB = 4 * KW; VW = 16384
PB = VB + 4 * VW
SC0 = PB + 24576
SC1 = SC0 + 3072
LDS_TOTAL = SC1 + 3072
FLAG = 1024
assert LDS_TOTAL == 163840

def vO(dt, r): return (dt * 3 + r) * 16
def vS(r): return 96 + 16 * r
def vPk(r, s): return 144 + (r * 2 + s) * 4
def vFV(b, dt): return 168 + 20 * b + 4 * dt
def vFP(b, r): return 168 + 20 * b + 8 + 4 * r
T0 = 208; NT = 24
vKrd, vVrd0, vVrd1, vPrd, vPwr, vKdma, vVdma = 232, 233, 234, 235, 236, 237, 238
vMc = [239, 240, 241]; vL = [242, 243, 244]; vTs = [245, 246, 247]
vSx, vSr, vFlagA, vFlag, vOut, vLane, vA, vB = 248, 249, 250, 251, 252, 253, 254, 255
def aQ(r, s): return (r * 16 + s) * 4
def aK(s): return 192 + 4 * s
sQ, sK, sV, sO = 12, 16, 20, 24
sW, sG, sU, sT, sC, sTh = 28, 29, 30, 31, 32, 33
sKm0 = [36, 37, 38, 39]; sVm0 = [40, 41, 42, 43]
def sKo(q, n): return 44 + q * 4 + n
def sVo(p): return 60 + p
sX, sY, sZ = 76, 77, 78
sOr = [80, 81, 82]
sWS = 84
sSt = 88

def v4(b, n=4): return f"v[{b}:{b+n-1}]"
def a4(b, n=4): return f"a[{b}:{b+n-1}]"
def s4(b): return f"s[{b}:{b+3}]"

def mfma(d, a, b, c): return f"v_mfma_f32_32x32x16_bf16 {d}, {a}, {b}, {c}"

def k_read(s, toff):
    q, sp = divmod(s, 4)
    return Op(f"ds_read_b128 {a4(aK(s))}, v{vKrd} offset:{q*4224 + sp*32}", tag=("Kr", toff, s),
              needs=[("K", toff, q, n) for n in range(4)])
def k_dma(cfg, q, n, toff, needs=()):
    return Op(f"buffer_load_dwordx4 v{vKdma}, {s4(sK)}, s{sKo(q,n)} offen offset:{n*1056} {cfg.kpol} lds".replace("  ", " "),
              tag=("K", toff, q, n), needs=needs)
def v_dma(cfg, p, toff, needs=()):
    return Op(f"buffer_load_dwordx4 v{vVdma}, {s4(sV)}, s{sVo(p)} offen offset:{(p%4)*1024} {cfg.vpol} lds".replace("  ", " "),
              tag=("V", toff, p), needs=needs)
def v_read(dst, kap, dt, half, toff):
    p = 2 * kap + half
    return Op(f"ds_read_b64_tr_b16 {dst}, v{vVrd0 + dt} offset:{p*1024}", tag=("Vr", toff, kap, dt, half), needs=[("V", toff, p)])
def p_read(dst, kap, r, toff):
    return Op(f"ds_read_b128 {dst}, v{vPrd} offset:{(kap*3 + r)*1024}", tag=("Pr", toff, kap, r))
def p_write(r, s, toff):
    return Op(f"ds_write_b128 v{vPwr}, {v4(vPk(r,s))} offset:{(s*3 + r)*1024}", tag=("Pw", toff, r, s))

def softmax_stream(r, tbase):
    ops = []
    def T(e): return tbase + (e % 8)
    fma = lambda e: Op(f"v_fma_f32 v{T(e)}, v{vS(r)+e}, s{sC}, -v{vMc[r]}")
    ex = lambda e: Op(f"v_exp_f32 v{T(e)}, v{T(e)}")
    def add(e):
        if e == 0: return None
        if e == 1: return Op(f"v_add_f32 v{vTs[r]}, v{T(0)}, v{T(1)}")
        return Op(f"v_add_f32 v{vTs[r]}, v{vTs[r]}, v{T(e)}")
    cvt = lambda e: Op(f"v_cvt_pk_bf16_f32 v{vPk(r, e//8) + (e%8)//2}, v{T(e-1)}, v{T(e)}")
    for i in range(-2, 17):
        if 0 <= i + 2 < 16: ops.append(fma(i + 2))
        if 0 <= i + 1 < 16: ops.append(ex(i + 1))
        if 0 <= i - 1 < 16:
            e = i - 1
            a = add(e)
            if a: ops.append(a)
            if e % 2 == 1: ops.append(cvt(e))
    return ops

def max_exchange(first):
    o = []
    M = [T0 + 16, T0 + 17, T0 + 18]
    for i in range(8):
        for r in range(3):
            b = vS(r)
            if i == 0: o.append(Op(f"v_max3_f32 v{M[r]}, v{b}, v{b+1}, v{b+2}"))
            elif i < 7: o.append(Op(f"v_max3_f32 v{M[r]}, v{M[r]}, v{b+2*i+1}, v{b+2*i+2}"))
            else: o.append(Op(f"v_max_f32 v{M[r]}, v{M[r]}, v{b+15}"))
    for r in range(3):
        o.append(Op(f"v_mul_f32 v{M[r]}, s{sC}, v{M[r]}"))
    if not first:
        for r in range(3):
            o.append(Op(f"v_max_f32 v{M[r]}, v{M[r]}, v{vMc[r]}"))
    for r in range(3):
        o.append(Op(f"ds_write_b32 v{vSx}, v{M[r]} offset:{r*1024}"))
    o.append(W(lgkm=0))
    o.append(Op("s_barrier"))
    return o, M

def max_gather(M, base):
    o = []
    for r in range(3):
        o.append(Op(f"ds_read_b128 {v4(base + 8*r)}, v{vSr} offset:{r*1024}"))
        o.append(Op(f"ds_read_b128 {v4(base + 8*r + 4)}, v{vSr} offset:{r*1024 + 16}"))
    o.append(W(lgkm=0))
    for i in range(4):
        for r in range(3):
            b = base + 8 * r
            if i == 0: o.append(Op(f"v_max3_f32 v{M[r]}, v{b}, v{b+1}, v{b+2}"))
            elif i < 3: o.append(Op(f"v_max3_f32 v{M[r]}, v{M[r]}, v{b+2*i+1}, v{b+2*i+2}"))
            else: o.append(Op(f"v_max_f32 v{M[r]}, v{M[r]}, v{b+7}"))
    return o

def stamp(cfg, i):
    if not cfg.stamps: return []
    return [Op(f"s_memtime s[{sSt + 2*i}:{sSt + 2*i + 1}]")]

def build(cfg):
    P = []; A = lambda t, **k: P.append(Op(t, **k))
    A("s_cmp_ge_u32 s2, 256"); A("s_cbranch_scc1 L_end")
    if cfg.stamps:
        A("s_memrealtime s[34:35]")
        P += stamp(cfg, 0)
        A(f"s_load_dwordx2 s[{sWS}:{sWS+1}], s[0:1], 40")
    A("s_load_dwordx8 s[4:11], s[0:1], 0")
    A(f"v_and_b32 v{vLane}, 63, v0")
    A(f"v_lshrrev_b32 v{vA}, 6, v0")
    A(f"s_and_b32 s{sG}, s2, 7")
    A(f"v_readfirstlane_b32 s{sW}, v{vA}")
    A(f"s_lshl_b32 s{sG}, s{sG}, 3"); A(f"s_lshr_b32 s{sX}, s2, 5"); A(f"s_add_u32 s{sG}, s{sG}, s{sX}")
    A(f"s_lshr_b32 s{sU}, s2, 3"); A(f"s_and_b32 s{sU}, s{sU}, 3"); A(f"s_lshl_b32 s{sX}, s{sG}, 2"); A(f"s_add_u32 s{sU}, s{sU}, s{sX}")
    t0, t1, t2, t3 = T0, T0 + 1, T0 + 2, T0 + 3
    A(f"v_lshrrev_b32 v{t0}, 3, v{vLane}")
    A(f"v_lshlrev_b32 v{t0}, 9, v{t0}")
    A(f"v_bfe_u32 v{t1}, v{vLane}, 4, 1")
    A(f"v_and_b32 v{t2}, 7, v{vLane}")
    A(f"v_xor_b32 v{t3}, v{t2}, v{t1}")
    A(f"v_lshl_add_u32 v{vKdma}, v{t3}, 4, v{t0}")
    A(f"v_lshlrev_b32 v{t1}, 2, v{t1}")
    A(f"v_xor_b32 v{t3}, v{t2}, v{t1}")
    A(f"v_lshl_add_u32 v{vVdma}, v{t3}, 4, v{t0}")
    A(f"s_mul_i32 s{sY}, s{sU}, 49152")
    A(f"s_lshl_b32 s{sX}, s{sW}, 7")
    A(f"s_add_u32 s{sY}, s{sY}, s{sX}")
    A(f"v_add_u32 v{vB}, s{sY}, v{vKdma}")
    A(f"s_lshl_b32 s{sZ}, s{sG}, 19")
    A(f"s_add_u32 s{sX}, s{sX}, s{sZ}")
    A(f"v_add_u32 v{vVdma}, s{sX}, v{vVdma}")
    A(f"s_lshl_b32 s{sX}, s{sW}, 14")
    A(f"s_add_u32 s{sX}, s{sX}, s{sZ}")
    A(f"v_add_u32 v{vKdma}, s{sX}, v{vKdma}")
    for q in range(4):
        for n in range(4):
            A(f"s_mov_b32 s{sKo(q,n)}, {n*3040 + q*128}")
    A(f"s_mul_i32 s{sX}, s{sW}, {KW}")
    for q in range(4): A(f"s_add_u32 s{sKm0[q]}, s{sX}, {KB + q*4224}")
    A(f"s_mul_i32 s{sVm0[0]}, s{sW}, 4224")
    P.append(W(lgkm=0))
    A(f"s_mov_b32 s{sQ}, s4"); A(f"s_mov_b32 s{sQ+1}, s5"); A(f"s_mov_b32 s{sQ+2}, 12582912"); A(f"s_mov_b32 s{sQ+3}, 0x20000")
    A(f"s_add_u32 s{sK+2}, s{sZ}, 524288")
    A(f"s_mov_b32 s{sK}, s6"); A(f"s_mov_b32 s{sK+1}, s7"); A(f"s_mov_b32 s{sK+3}, 0x20000")
    for r in range(3):
        A(f"s_add_u32 m0, s{sVm0[0]}, {VB + r*KW}")
        if r > 0: A(f"v_add_u32 v{vB}, 0x4000, v{vB}")
        else: A("s_nop 0")
        for n in range(4):
            A(f"buffer_load_dwordx4 v{vB}, {s4(sQ)}, s{sKo(0,n)} offen offset:{n*1056} {cfg.qpol} lds".replace("  ", " "), tag=("Q", 0, r, n))
    for q in range(4):
        A(f"s_mov_b32 m0, s{sKm0[q]}")
        A("s_nop 0")
        for n in range(4): P.append(k_dma(cfg, q, n, 1))
    A(f"v_add_u32 v{vKdma}, 0x10000, v{vKdma}")
    A(f"s_mov_b32 s{sV}, s8"); A(f"s_mov_b32 s{sV+1}, s9"); A(f"s_mov_b32 s{sV+2}, 33554432"); A(f"s_mov_b32 s{sV+3}, 0x20000")
    A(f"s_mov_b32 s{sO}, s10"); A(f"s_mov_b32 s{sO+1}, s11"); A(f"s_mov_b32 s{sO+2}, 12582912"); A(f"s_mov_b32 s{sO+3}, 0x20000")
    for p in range(16): A(f"s_mov_b32 s{sVo(p)}, {(p//4)*16384 + (p%4)*3072}")
    A(f"s_lshl_b32 s{sX}, s{sW}, 14")
    for b in range(4): A(f"s_add_u32 s{sVm0[b]}, s{sX}, {VB + b*4096}")
    for r in range(3): A(f"s_mov_b32 s{sOr[r]}, {r*16384}")
    A(f"s_mov_b32 s{sC}, {hex(f2u(math.log2(math.e) / 16.0))}")
    A(f"s_mov_b32 s{sTh}, {hex(f2u(cfg.thresh))}")
    A(f"s_mov_b32 s{sT}, 0")
    A(f"v_bfe_u32 v{t0}, v{vLane}, 3, 2")
    A(f"v_mul_u32_u24 v{t0}, 1056, v{t0}")
    A(f"v_and_b32 v{t1}, 7, v{vLane}")
    A(f"v_lshl_add_u32 v{t0}, v{t1}, 7, v{t0}")
    A(f"v_lshrrev_b32 v{t1}, 5, v{vLane}")
    A(f"v_bfe_u32 v{t2}, v{vLane}, 1, 1")
    A(f"v_xor_b32 v{t2}, v{t2}, v{t1}")
    A(f"v_lshl_add_u32 v{t0}, v{t2}, 4, v{t0}")
    A(f"v_add_u32 v{vA}, {VB}, v{t0}")
    A(f"v_add_u32 v{vKrd}, s{sKm0[0]}, v{t0}")
    A(f"v_bfe_u32 v{t0}, v{vLane}, 2, 2")
    A(f"v_lshl_add_u32 v{t0}, v{t1}, 2, v{t0}")
    A(f"v_lshlrev_b32 v{t0}, 7, v{t0}")
    A(f"v_bfe_u32 v{t2}, v{vLane}, 3, 1")
    A(f"v_lshl_add_u32 v{t0}, v{t2}, 6, v{t0}")
    A(f"v_bfe_u32 v{t2}, v{vLane}, 4, 1")
    A(f"v_lshl_add_u32 v{t0}, v{t2}, 5, v{t0}")
    A(f"v_and_b32 v{t2}, 3, v{vLane}")
    A(f"v_lshl_add_u32 v{t0}, v{t2}, 3, v{t0}")
    A(f"v_add_u32 v{vVrd0}, s{sVm0[0]}, v{t0}")
    A(f"v_xor_b32 v{vVrd1}, 64, v{vVrd0}")
    A(f"v_lshlrev_b32 v{t0}, 4, v{vLane}")
    A(f"v_add_u32 v{vPrd}, {PB}, v{t0}")
    A(f"s_mul_i32 s{sX}, s{sW}, 6144")
    A(f"v_add_u32 v{vPwr}, s{sX}, v{vPrd}")
    A(f"v_and_b32 v{t0}, 31, v{vLane}")
    A(f"v_lshlrev_b32 v{t2}, 5, v{t0}")
    A(f"v_add_u32 v{vSr}, {SC0}, v{t2}")
    A(f"s_lshl_b32 s{sX}, s{sW}, 3")
    A(f"v_lshl_add_u32 v{t2}, v{t1}, 2, v{vSr}")
    A(f"v_add_u32 v{vSx}, s{sX}, v{t2}")
    A(f"v_lshlrev_b32 v{t0}, 9, v{t0}")
    A(f"v_lshl_add_u32 v{t0}, v{t1}, 4, v{t0}")
    A(f"v_add_u32 v{vOut}, s{sY}, v{t0}")
    A(f"v_mov_b32 v{vFlagA}, {FLAG}")
    A(f"v_mov_b32 v{vFlag}, 0")
    A(f"ds_write_b32 v{vFlagA}, v{vFlag}")
    for i in range(96): A(f"v_mov_b32 v{i}, 0")
    for r in range(3): A(f"v_mov_b32 v{vL[r]}, 0")
    P.append(W(lgkm=0))
    A("s_barrier", needs=[("Q", 0, r, n) for r in range(3) for n in range(4)])
    P += stamp(cfg, 1)
    def q_read(r, s):
        q, sp = divmod(s, 4)
        return Op(f"ds_read_b128 {a4(aQ(r,s))}, v{vA} offset:{r*KW + q*4224 + sp*32}", tag=("Qr", 0, r, s))
    LA = 2
    def rd(s): return [k_read(s, 1)] + [q_read(r, s) for r in range(3)]
    for s in range(LA): P += rd(s)
    for s in range(16):
        nxt = rd(s + LA) if s + LA < 16 else []
        for r in range(3):
            needs = [("Kr", 1, s)] + [("Qr", 0, rr, s) for rr in range(3)] if r == 0 else []
            A(mfma(v4(vS(r), 16), a4(aK(s)), a4(aQ(r, s)), "0" if s == 0 else v4(vS(r), 16)), needs=needs)
            if r == 0: P += nxt[:2]
            if r == 1: P += nxt[2:]
            if r == 2 and s >= 4:
                q, n = divmod(s - 4, 4)
                if n == 0: A(f"s_mov_b32 m0, s{sKm0[q]}"); A("s_nop 0")
                P.append(k_dma(cfg, q, n, 2, needs=[("Kr", 1, 4*q + i) for i in range(4)]))
    A(f"s_mov_b32 m0, s{sKm0[3]}"); A("s_nop 0")
    for n in range(4): P.append(k_dma(cfg, 3, n, 2, needs=[("Kr", 1, 12 + i) for i in range(4)]))
    A(f"v_add_u32 v{vKdma}, 0x10000, v{vKdma}")
    A("s_nop 7")
    P += stamp(cfg, 2)
    o, M = max_exchange(True)
    P += o
    for p in range(16):
        if p % 4 == 0: A(f"s_mov_b32 m0, s{sVm0[p//4]}"); A("s_nop 0")
        P.append(v_dma(cfg, p, 1))
    A(f"v_add_u32 v{vVdma}, 0x10000, v{vVdma}")
    P += max_gather(M, vFV(0, 0))
    for r in range(3): A(f"v_mov_b32 v{vMc[r]}, v{M[r]}")
    for s in range(4): P.append(k_read(s, 2))
    for r in range(3): P += softmax_stream(r, T0 + 8 * (r % 2))
    P += stamp(cfg, 3)

    G = [[] for _ in range(96)]
    MF = []
    for r in range(3):
        for s in range(16):
            needs = []
            if r == 0 and s % 2 == 0: needs = [("Kr", 1, s), ("Kr", 1, s + 1)]
            MF.append(Op(mfma(v4(vS(r), 16), a4(aK(s)), a4(aQ(r, s)), "0" if s == 0 else v4(vS(r), 16)), needs=needs))
    for kap in range(8):
        b = kap % 2
        for dt in range(2):
            for r in range(3):
                needs = []
                if dt == 0 and r == 0:
                    needs = [("Vr", 0, kap, d, h) for d in range(2) for h in range(2)] + [("Pr", 0, kap, rr) for rr in range(3)]
                MF.append(Op(mfma(v4(vO(dt, r), 16), v4(vFV(b, dt)), v4(vFP(b, r)), v4(vO(dt, r), 16)), needs=needs))
    for s in range(4, 16): G[s - 4].append(k_read(s, 1))
    pw = [(r, s) for r in range(3) for s in range(2)]
    for i, (r, s) in enumerate(pw): G[i].append(p_write(r, s, 0))
    for r in range(3): G[12 + r].append(Op(f"v_add_f32 v{vL[r]}, v{vL[r]}, v{vTs[r]}"))
    for q in range(4):
        G[5 + 4 * q].append(Op(f"s_mov_b32 m0, s{sKm0[q]}"))
        for n in range(4):
            G[6 + 4 * q + n].append(k_dma(cfg, q, n, 2, needs=[("Kr", 1, 4*q + i) for i in range(4)]))
    G[22].append(Op(f"v_add_u32 v{vKdma}, 0x10000, v{vKdma}"))
    G[16].append(Op("s_barrier", needs=[("Pw", 0, r, s) for r, s in pw]))
    def frag_reads(kap):
        b = kap % 2
        return [v_read(v4(vFV(b, 0), 2), kap, 0, 0, 0), v_read(v4(vFV(b, 0) + 2, 2), kap, 0, 1, 0),
                p_read(v4(vFP(b, 0)), kap, 0, 0), p_read(v4(vFP(b, 1)), kap, 1, 0), p_read(v4(vFP(b, 2)), kap, 2, 0),
                v_read(v4(vFV(b, 1), 2), kap, 1, 0, 0), v_read(v4(vFV(b, 1) + 2, 2), kap, 1, 1, 0)]
    for kap in range(8):
        g0 = 42 + 6 * kap
        fr = frag_reads(kap)
        fr[0].needs = [("V", 0, 2 * kap), ("V", 0, 2 * kap + 1)]
        for i, gi in enumerate([0, 0, 1, 1, 2, 2, 3]): G[g0 + gi].append(fr[i])
    for kap in range(8):
        g0 = 48 + 6 * kap
        if kap % 2 == 0: G[g0 + 3].append(Op(f"s_mov_b32 m0, s{sVm0[kap//2]}"))
        for half in range(2):
            G[g0 + 4 + half].append(v_dma(cfg, 2 * kap + half, 1, needs=[("Vr", 0, kap, d, half) for d in range(2)]))
    G[88].append(Op(f"v_max3_f32 v{vA}, v{vTs[0]}, v{vTs[1]}, v{vTs[2]}"))
    G[89].append(Op(f"v_cmp_nge_f32 vcc, s{sTh}, v{vA}"))
    G[89].append(Op("s_cbranch_vccnz L_notify"))
    G[89].append(Op("L_notified:"))
    G[90].append(Op("s_barrier", needs=[("Pr", 0, 7, r) for r in range(3)]))
    G[90].append(Op(f"ds_read_b32 v{vFlag}, v{vFlagA}", tag=("F", 0)))
    for s in range(4): G[91 + s // 2].append(k_read(s, 2))
    G[93].append(Op(f"s_add_u32 s{sT}, s{sT}, 1"))
    G[93].append(Op(f"s_cmp_lt_u32 s{sT}, 7"))
    G[93].append(Op(f"v_cmp_ne_u32 vcc, 0, v{vFlag}", needs=[("F", 0)]))
    G[95].append(Op(f"v_add_u32 v{vVdma}, 0x10000, v{vVdma}"))
    used = [sum(o.cost for o in g) + (4 if MF[(i + 1) % 96].needs else 0) for i, g in enumerate(G)]
    starts = [19, 35, 51]
    last = 87
    gi = 0
    plan = getattr(cfg, "sm_ranges", [(20, 38), (38, 62), (62, 87)])
    for r in range(3):
        st = softmax_stream(r, T0 + 8 * (r % 2))
        lo, hi = plan[r]
        tot = sum(o.cost for o in st)
        free = [max(0, cfg.budget - used[g]) for g in range(lo, hi)]
        ftot = sum(free)
        assert ftot >= tot * 0.9, (r, ftot, tot)
        acc = 0.0; done = 0.0; k = 0
        for g in range(lo, hi):
            acc += tot * free[g - lo] / ftot
            while k < len(st) and done + st[k].cost / 2 <= acc:
                G[g].append(st[k]); used[g] += st[k].cost; done += st[k].cost; k += 1
        while k < len(st):
            G[hi - 1].append(st[k]); used[hi - 1] += st[k].cost; k += 1
    cfg.used = used
    Lp = [Op(".p2align 6"), Op("L_loop:")]
    for g in range(96):
        Lp.append(MF[g]); Lp += G[g]
    Lp.append(Op("s_cbranch_vccnz L_slow"))
    Lp.append(Op("L_slow_ret:"))
    Lp.append(Op("s_cbranch_scc1 L_loop"))

    F = []; A = lambda t, **k: F.append(Op(t, **k))
    F += stamp(cfg, 4)
    for r, s in pw: F.append(p_write(r, s, 0))
    for r in range(3): A(f"v_add_f32 v{vL[r]}, v{vL[r]}, v{vTs[r]}")
    for r in range(3): A(f"ds_write_b32 v{vSx}, v{vL[r]} offset:{3072 + r*1024}", tag=("Lw", 0, r))
    def fV(kap, dt): return (dt * 8 + kap) * 4
    def fP(kap, r): return 64 + (r * 8 + kap) * 4
    def fv_reads(dt, kaps):
        return [v_read(a4(fV(kap, dt) + 2 * half, 2), kap, dt, half, 0) for kap in kaps for half in range(2)]
    F += fv_reads(0, range(0, 3))
    A("s_barrier", needs=[("Pw", 0, r, s) for r, s in pw] + [("Lw", 0, r) for r in range(3)])
    for kap in range(3): F.append(p_read(a4(fP(kap, 0)), kap, 0, 0))
    rest = []
    for kap in range(3, 8):
        rest += fv_reads(0, [kap]) + [p_read(a4(fP(kap, 0)), kap, 0, 0)]
    lb = vFV(0, 0)
    for r in range(3):
        rest.append(Op(f"ds_read_b128 {v4(lb + 8*r)}, v{vSr} offset:{3072 + r*1024}", tag=("Lr", 0, r, 0)))
        rest.append(Op(f"ds_read_b128 {v4(lb + 8*r + 4)}, v{vSr} offset:{3072 + r*1024 + 16}", tag=("Lr", 0, r, 1)))
    for r in (1, 2):
        rest += [p_read(a4(fP(kap, r)), kap, r, 0) for kap in range(8)]
    rest += fv_reads(1, range(8))
    lred = []
    for i in range(7):
        for r in range(3):
            b = lb + 8 * r
            if i == 0: lred.append(Op(f"v_add_f32 v{vL[r]}, v{b}, v{b+1}", needs=[("Lr", 0, rr, x) for rr in range(3) for x in range(2)]))
            else: lred.append(Op(f"v_add_f32 v{vL[r]}, v{vL[r]}, v{b+i+1}"))
    for r in range(3): lred.append(Op(f"v_rcp_f32 v{vL[r]}, v{vL[r]}"))
    def out_ops(dt, r, tb):
        o = []
        b = vO(dt, r)
        for pair in range(2):
            t = tb + 4 * pair
            for i in range(8): o.append(Op(f"v_mul_f32 v{b+8*pair+i}, v{b+8*pair+i}, v{vL[r]}"))
            for i in range(4): o.append(Op(f"v_cvt_pk_bf16_f32 v{t+i}, v{b+8*pair+2*i}, v{b+8*pair+2*i+1}"))
        for pair in range(2):
            t = tb + 4 * pair
            o.append(Op(f"v_permlane32_swap_b32 v{t}, v{t+2}"))
            o.append(Op(f"v_permlane32_swap_b32 v{t+1}, v{t+3}"))
        for pair in range(2):
            t = tb + 4 * pair
            o.append(Op(f"buffer_store_dwordx4 {v4(t)}, v{vOut}, {s4(sO)}, s{sOr[r]} offen offset:{dt*64 + pair*32} {cfg.opol}".rstrip()))
        return o
    tiles = [(0, 0), (0, 1), (0, 2), (1, 0), (1, 1), (1, 2)]
    pend = [(9, o) for o in lred]
    g = 0
    for ti, (dt, r) in enumerate(tiles):
        for kap in range(8):
            A(mfma(v4(vO(dt, r), 16), a4(fV(kap, dt)), a4(fP(kap, r)), v4(vO(dt, r), 16)),
              needs=[("Vr", 0, kap, dt, 0), ("Vr", 0, kap, dt, 1), ("Pr", 0, kap, r)])
            room = 20
            while rest and room >= 8:
                F.append(rest.pop(0)); room -= 6
            while pend and pend[0][0] <= g and room >= pend[0][1].cost:
                room -= pend[0][1].cost; F.append(pend.pop(0)[1])
            g += 1
        pend += [(g + 3, o) for o in out_ops(dt, r, vS(0) + 8 * ti)]
    A("s_nop 7")
    A("s_nop 3")
    F += [o for _, o in pend]
    if cfg.stamps:
        F += stamp(cfg, 5)
        F.append(W(vm=0))
        F += stamp(cfg, 6)
        A("s_memrealtime s[6:7]")
        F.append(W(lgkm=0))
        A(f"s_mov_b32 s{sWS+2}, 0x1000000"); A(f"s_mov_b32 s{sWS+3}, 0x20000")
        A("v_mov_b32 v0, s34"); A("v_mov_b32 v1, s6")
        for i in range(1, 7):
            A(f"s_sub_u32 s{sX}, s{sSt+2*i}, s{sSt}")
            A(f"v_mov_b32 v{1+i}, s{sX}")
        A(f"s_lshl_b32 s{sX}, s2, 7"); A(f"s_lshl_b32 s{sY}, s{sW}, 5"); A(f"s_add_u32 s{sX}, s{sX}, s{sY}")
        A(f"v_mov_b32 v8, s{sX}")
        A(f"v_cmp_eq_u32 vcc, 0, v{vLane}")
        A("s_and_saveexec_b64 s[4:5], vcc")
        A(f"buffer_store_dwordx4 v[0:3], v8, {s4(sWS)}, 0 offen")
        A(f"buffer_store_dwordx4 v[4:7], v8, {s4(sWS)}, 0 offen offset:16")
    A("L_end:")
    A("s_endpgm")

    N = [Op("L_notify:"), Op(f"v_mov_b32 v{vFlag}, 1"), Op(f"ds_write_b32 v{vFlagA}, v{vFlag}"), W(lgkm=0), Op("s_branch L_notified")]
    S = [Op("L_slow:"), W(lgkm=0), Op("s_nop 7"), Op("s_nop 3")]
    o, M = max_exchange(False)
    S += o
    S.append(Op(f"v_mov_b32 v{vFlag}, 0"))
    S.append(Op(f"ds_write_b32 v{vFlagA}, v{vFlag}"))
    S += max_gather(M, vFV(0, 0))
    Fk = [T0 + 19, T0 + 20, T0 + 21]
    for r in range(3): S.append(Op(f"v_sub_f32 v{Fk[r]}, v{vMc[r]}, v{M[r]}"))
    for r in range(3): S.append(Op(f"v_exp_f32 v{Fk[r]}, v{Fk[r]}"))
    for r in range(3): S.append(Op(f"v_mov_b32 v{vMc[r]}, v{M[r]}"))
    for r in range(3): S.append(Op(f"v_mul_f32 v{vL[r]}, v{vL[r]}, v{Fk[r]}"))
    for dt in range(2):
        for r in range(3):
            for i in range(16): S.append(Op(f"v_mul_f32 v{vO(dt,r)+i}, v{vO(dt,r)+i}, v{Fk[r]}"))
    for r in range(3): S += softmax_stream(r, T0 + 8 * (r % 2))
    S.append(Op(f"s_cmp_lt_u32 s{sT}, 7"))
    S.append(Op("s_branch L_slow_ret"))

    trace = [(o, -1) for o in P]
    for t in range(7): trace += [(o, t) for o in Lp]
    trace += [(o, 7) for o in F]
    derive_waits(trace)
    errs = check_hazards(P + Lp + Lp + F) + check_hazards(Lp + S + Lp) + check_hazards(Lp + S + F)
    for e in sorted(set(errs)): print("HAZARD", e, file=sys.stderr)
    assert not errs
    hdr = [l for l in open("standalone__gqa_softmax__near_ridge.s.ref").read().splitlines() if l.startswith(";") and "@launch grid" not in l] if cfg.refhdr else []
    L = header(256, 256, LDS_TOTAL, hdr)
    L += emit(P) + emit(Lp) + emit(F) + emit(N) + emit(S)
    L += footer(512, 256)
    return "\n".join(L) + "\n"

def analyze(w, f):
    import numpy as np
    x = w[:256*4*8].reshape(256, 4, 8).astype(np.int64)
    st = x[:, :, 0]; en = x[:, :, 1]
    t0 = st.min()
    names = ["qk_landed", "qk0_done", "sm0_done", "loop_done", "issue_done", "stores_done"]
    print(f"  span {(en.max()-t0)/100:.2f} us; start spread {(st.max()-t0)/100:.2f}; end min {(en.min()-t0)/100:.2f} med {(np.median(en)-t0)/100:.2f}; clk {np.median(x[:,:,7]/((en-st)/100.0)):.0f} MHz")
    print("  " + "  ".join(f"{n}: {int(np.median(x[:,:,2+i]))} [{x[:,:,2+i].min()}..{x[:,:,2+i].max()}]" for i, n in enumerate(names)))

if __name__ == "__main__":
    cfg = Cfg(); cfg.refhdr = False
    out = sys.argv[1]
    for a in sys.argv[2:]:
        k, v = a.split("=", 1)
        if k in ("stamps", "refhdr"): v = bool(int(v))
        elif k in ("budget",): v = int(v)
        elif k in ("thresh",): v = float(v)
        setattr(cfg, k, v)
    open(out, "w").write(build(cfg))
    print("gap costs:", cfg.used, file=sys.stderr)
```

```python
import sys, math, struct
from fw import *
from asmlib import header, footer, NAME

def f2u(x): return struct.unpack("<I", struct.pack("<f", x))[0]

class Cfg:
    kpol = ""
    vpol = ""
    qpol = ""
    opol = ""
    stamps = False
    dbg = False
    budget = 22
    thresh = 65536.0

KW = 16896; KB = 0
VB = 4 * KW; VW = 16384
PB = VB + 4 * VW
SC0 = PB + 24576
SC1 = SC0 + 3072
LDS_TOTAL = SC1 + 3072
FLAG = 1024
assert LDS_TOTAL == 163840

def vO(dt, r): return (dt * 3 + r) * 16
def vS(r): return 96 + 16 * r
def vPk(r, s): return 144 + (r * 2 + s) * 4
def vFV(b, dt): return 168 + 20 * b + 4 * dt
def vFP(b, r): return 168 + 20 * b + 8 + 4 * r
T0 = 208; NT = 24
vKrd, vVrd0, vVrd1, vPrd, vPwr, vKdma, vVdma = 232, 233, 234, 235, 236, 237, 238
vMc = [239, 240, 241]; vL = [242, 243, 244]; vTs = [245, 246, 247]
vSx, vSr, vFlagA, vFlag, vOut, vLane, vA, vB = 248, 249, 250, 251, 252, 253, 254, 255
def aQ(r, s): return (r * 16 + s) * 4
def aK(s): return 192 + 4 * s
sQ, sK, sV, sO = 12, 16, 20, 24
sW, sG, sU, sT, sC, sTh = 28, 29, 30, 31, 32, 33
sKm0 = [36, 37, 38, 39]; sVm0 = [40, 41, 42, 43]
def sKo(q, n): return 44 + q * 4 + n
def sVo(p): return 60 + p
sX, sY, sZ = 76, 77, 78
sOr = [80, 81, 82]
sWS = 84
sSt = 88

def v4(b, n=4): return f"v[{b}:{b+n-1}]"
def a4(b, n=4): return f"a[{b}:{b+n-1}]"
def s4(b): return f"s[{b}:{b+3}]"

def mfma(d, a, b, c): return f"v_mfma_f32_32x32x16_bf16 {d}, {a}, {b}, {c}"

def k_read(s, toff):
    q, sp = divmod(s, 4)
    return Op(f"ds_read_b128 {a4(aK(s))}, v{vKrd} offset:{q*4224 + sp*32}", tag=("Kr", toff, s),
              needs=[("K", toff, q, n) for n in range(4)])
def k_dma(cfg, q, n, toff, needs=()):
    return Op(f"buffer_load_dwordx4 v{vKdma}, {s4(sK)}, s{sKo(q,n)} offen offset:{n*1056} {cfg.kpol} lds".replace("  ", " "),
              tag=("K", toff, q, n), needs=needs)
def v_dma(cfg, p, toff, needs=()):
    return Op(f"buffer_load_dwordx4 v{vVdma}, {s4(sV)}, s{sVo(p)} offen offset:{(p%4)*1024} {cfg.vpol} lds".replace("  ", " "),
              tag=("V", toff, p), needs=needs)
def v_read(dst, kap, dt, half, toff):
    p = 2 * kap + half
    return Op(f"ds_read_b64_tr_b16 {dst}, v{vVrd0 + dt} offset:{p*1024}", tag=("Vr", toff, kap, dt, half), needs=[("V", toff, p)])
def p_read(dst, kap, r, toff):
    return Op(f"ds_read_b128 {dst}, v{vPrd} offset:{(kap*3 + r)*1024}", tag=("Pr", toff, kap, r))
def p_write(r, s, toff):
    return Op(f"ds_write_b128 v{vPwr}, {v4(vPk(r,s))} offset:{(s*3 + r)*1024}", tag=("Pw", toff, r, s))

def softmax_stream(r, tbase):
    ops = []
    def T(e): return tbase + (e % 8)
    fma = lambda e: Op(f"v_fma_f32 v{T(e)}, v{vS(r)+e}, s{sC}, -v{vMc[r]}")
    ex = lambda e: Op(f"v_exp_f32 v{T(e)}, v{T(e)}")
    def add(e):
        if e == 0: return None
        if e == 1: return Op(f"v_add_f32 v{vTs[r]}, v{T(0)}, v{T(1)}")
        return Op(f"v_add_f32 v{vTs[r]}, v{vTs[r]}, v{T(e)}")
    cvt = lambda e: Op(f"v_cvt_pk_bf16_f32 v{vPk(r, e//8) + (e%8)//2}, v{T(e-1)}, v{T(e)}")
    for i in range(-2, 17):
        if 0 <= i + 2 < 16: ops.append(fma(i + 2))
        if 0 <= i + 1 < 16: ops.append(ex(i + 1))
        if 0 <= i - 1 < 16:
            e = i - 1
            a = add(e)
            if a: ops.append(a)
            if e % 2 == 1: ops.append(cvt(e))
    return ops

def max_exchange(first):
    o = []
    M = [T0 + 16, T0 + 17, T0 + 18]
    for i in range(8):
        for r in range(3):
            b = vS(r)
            if i == 0: o.append(Op(f"v_max3_f32 v{M[r]}, v{b}, v{b+1}, v{b+2}"))
            elif i < 7: o.append(Op(f"v_max3_f32 v{M[r]}, v{M[r]}, v{b+2*i+1}, v{b+2*i+2}"))
            else: o.append(Op(f"v_max_f32 v{M[r]}, v{M[r]}, v{b+15}"))
    for r in range(3):
        o.append(Op(f"v_mul_f32 v{M[r]}, s{sC}, v{M[r]}"))
    if not first:
        for r in range(3):
            o.append(Op(f"v_max_f32 v{M[r]}, v{M[r]}, v{vMc[r]}"))
    for r in range(3):
        o.append(Op(f"ds_write_b32 v{vSx}, v{M[r]} offset:{r*1024}"))
    o.append(W(lgkm=0))
    o.append(Op("s_barrier"))
    return o, M

def max_gather(M, base):
    o = []
    for r in range(3):
        o.append(Op(f"ds_read_b128 {v4(base + 8*r)}, v{vSr} offset:{r*1024}"))
        o.append(Op(f"ds_read_b128 {v4(base + 8*r + 4)}, v{vSr} offset:{r*1024 + 16}"))
    o.append(W(lgkm=0))
    for i in range(4):
        for r in range(3):
            b = base + 8 * r
            if i == 0: o.append(Op(f"v_max3_f32 v{M[r]}, v{b}, v{b+1}, v{b+2}"))
            elif i < 3: o.append(Op(f"v_max3_f32 v{M[r]}, v{M[r]}, v{b+2*i+1}, v{b+2*i+2}"))
            else: o.append(Op(f"v_max_f32 v{M[r]}, v{M[r]}, v{b+7}"))
    return o

def stamp(cfg, i):
    if not cfg.stamps: return []
    return [Op(f"s_memtime s[{sSt + 2*i}:{sSt + 2*i + 1}]")]

def build(cfg):
    P = []; A = lambda t, **k: P.append(Op(t, **k))
    A("s_cmp_ge_u32 s2, 256"); A("s_cbranch_scc1 L_end")
    if cfg.stamps:
        A("s_memrealtime s[34:35]")
        P += stamp(cfg, 0)
        A(f"s_load_dwordx2 s[{sWS}:{sWS+1}], s[0:1], {32 if cfg.dbg else 40}")
    A("s_load_dwordx8 s[4:11], s[0:1], 0")
    A(f"v_and_b32 v{vLane}, 63, v0")
    A(f"v_lshrrev_b32 v{vA}, 6, v0")
    A(f"s_and_b32 s{sG}, s2, 7")
    A(f"v_readfirstlane_b32 s{sW}, v{vA}")
    A(f"s_lshl_b32 s{sG}, s{sG}, 3"); A(f"s_lshr_b32 s{sX}, s2, 5"); A(f"s_add_u32 s{sG}, s{sG}, s{sX}")
    A(f"s_lshr_b32 s{sU}, s2, 3"); A(f"s_and_b32 s{sU}, s{sU}, 3"); A(f"s_lshl_b32 s{sX}, s{sG}, 2"); A(f"s_add_u32 s{sU}, s{sU}, s{sX}")
    t0, t1, t2, t3 = T0, T0 + 1, T0 + 2, T0 + 3
    A(f"v_lshrrev_b32 v{t0}, 3, v{vLane}")
    A(f"v_lshlrev_b32 v{t0}, 9, v{t0}")
    A(f"v_bfe_u32 v{t1}, v{vLane}, 4, 1")
    A(f"v_and_b32 v{t2}, 7, v{vLane}")
    A(f"v_xor_b32 v{t3}, v{t2}, v{t1}")
    A(f"v_lshl_add_u32 v{vKdma}, v{t3}, 4, v{t0}")
    A(f"v_lshlrev_b32 v{t1}, 2, v{t1}")
    A(f"v_xor_b32 v{t3}, v{t2}, v{t1}")
    A(f"v_lshl_add_u32 v{vVdma}, v{t3}, 4, v{t0}")
    A(f"s_mul_i32 s{sY}, s{sU}, 49152")
    A(f"s_lshl_b32 s{sX}, s{sW}, 7")
    A(f"s_add_u32 s{sY}, s{sY}, s{sX}")
    A(f"v_add_u32 v{vB}, s{sY}, v{vKdma}")
    A(f"s_lshl_b32 s{sZ}, s{sG}, 19")
    A(f"s_add_u32 s{sX}, s{sX}, s{sZ}")
    A(f"v_add_u32 v{vVdma}, s{sX}, v{vVdma}")
    A(f"s_lshl_b32 s{sX}, s{sW}, 14")
    A(f"s_add_u32 s{sX}, s{sX}, s{sZ}")
    A(f"v_add_u32 v{vKdma}, s{sX}, v{vKdma}")
    for q in range(4):
        for n in range(4):
            A(f"s_mov_b32 s{sKo(q,n)}, {n*3040 + q*128}")
    A(f"s_mul_i32 s{sX}, s{sW}, {KW}")
    for q in range(4): A(f"s_add_u32 s{sKm0[q]}, s{sX}, {KB + q*4224}")
    A(f"s_mul_i32 s{sVm0[0]}, s{sW}, 4224")
    P.append(W(lgkm=0))
    A(f"s_mov_b32 s{sQ}, s4"); A(f"s_mov_b32 s{sQ+1}, s5"); A(f"s_mov_b32 s{sQ+2}, 12582912"); A(f"s_mov_b32 s{sQ+3}, 0x20000")
    A(f"s_add_u32 s{sK+2}, s{sZ}, 524288")
    A(f"s_mov_b32 s{sK}, s6"); A(f"s_mov_b32 s{sK+1}, s7"); A(f"s_mov_b32 s{sK+3}, 0x20000")
    for r in range(3):
        A(f"s_add_u32 m0, s{sVm0[0]}, {VB + r*KW}")
        if r > 0: A(f"v_add_u32 v{vB}, 0x4000, v{vB}")
        else: A("s_nop 0")
        for n in range(4):
            A(f"buffer_load_dwordx4 v{vB}, {s4(sQ)}, s{sKo(0,n)} offen offset:{n*1056} {cfg.qpol} lds".replace("  ", " "), tag=("Q", 0, r, n))
    for q in range(4):
        A(f"s_mov_b32 m0, s{sKm0[q]}")
        A("s_nop 0")
        for n in range(4): P.append(k_dma(cfg, q, n, 1))
    A(f"v_add_u32 v{vKdma}, 0x10000, v{vKdma}")
    A(f"s_mov_b32 s{sV}, s8"); A(f"s_mov_b32 s{sV+1}, s9"); A(f"s_mov_b32 s{sV+2}, 33554432"); A(f"s_mov_b32 s{sV+3}, 0x20000")
    A(f"s_mov_b32 s{sO}, s10"); A(f"s_mov_b32 s{sO+1}, s11"); A(f"s_mov_b32 s{sO+2}, 12582912"); A(f"s_mov_b32 s{sO+3}, 0x20000")
    for p in range(16): A(f"s_mov_b32 s{sVo(p)}, {(p//4)*16384 + (p%4)*3072}")
    A(f"s_lshl_b32 s{sX}, s{sW}, 14")
    for b in range(4): A(f"s_add_u32 s{sVm0[b]}, s{sX}, {VB + b*4096}")
    for r in range(3): A(f"s_mov_b32 s{sOr[r]}, {r*16384}")
    A(f"s_mov_b32 s{sC}, {hex(f2u(math.log2(math.e) / 16.0))}")
    A(f"s_mov_b32 s{sTh}, {hex(f2u(cfg.thresh))}")
    A(f"s_mov_b32 s{sT}, 0")
    A(f"v_bfe_u32 v{t0}, v{vLane}, 3, 2")
    A(f"v_mul_u32_u24 v{t0}, 1056, v{t0}")
    A(f"v_and_b32 v{t1}, 7, v{vLane}")
    A(f"v_lshl_add_u32 v{t0}, v{t1}, 7, v{t0}")
    A(f"v_lshrrev_b32 v{t1}, 5, v{vLane}")
    A(f"v_bfe_u32 v{t2}, v{vLane}, 1, 1")
    A(f"v_xor_b32 v{t2}, v{t2}, v{t1}")
    A(f"v_lshl_add_u32 v{t0}, v{t2}, 4, v{t0}")
    A(f"v_add_u32 v{vA}, {VB}, v{t0}")
    A(f"v_add_u32 v{vKrd}, s{sKm0[0]}, v{t0}")
    A(f"v_bfe_u32 v{t0}, v{vLane}, 2, 2")
    A(f"v_lshl_add_u32 v{t0}, v{t1}, 2, v{t0}")
    A(f"v_lshlrev_b32 v{t0}, 7, v{t0}")
    A(f"v_bfe_u32 v{t2}, v{vLane}, 3, 1")
    A(f"v_lshl_add_u32 v{t0}, v{t2}, 6, v{t0}")
    A(f"v_bfe_u32 v{t2}, v{vLane}, 4, 1")
    A(f"v_lshl_add_u32 v{t0}, v{t2}, 5, v{t0}")
    A(f"v_and_b32 v{t2}, 3, v{vLane}")
    A(f"v_lshl_add_u32 v{t0}, v{t2}, 3, v{t0}")
    A(f"v_add_u32 v{vVrd0}, s{sVm0[0]}, v{t0}")
    A(f"v_xor_b32 v{vVrd1}, 64, v{vVrd0}")
    A(f"v_lshlrev_b32 v{t0}, 4, v{vLane}")
    A(f"v_add_u32 v{vPrd}, {PB}, v{t0}")
    A(f"s_mul_i32 s{sX}, s{sW}, 6144")
    A(f"v_add_u32 v{vPwr}, s{sX}, v{vPrd}")
    A(f"v_and_b32 v{t0}, 31, v{vLane}")
    A(f"v_lshlrev_b32 v{t2}, 5, v{t0}")
    A(f"v_add_u32 v{vSr}, {SC0}, v{t2}")
    A(f"s_lshl_b32 s{sX}, s{sW}, 3")
    A(f"v_lshl_add_u32 v{t2}, v{t1}, 2, v{vSr}")
    A(f"v_add_u32 v{vSx}, s{sX}, v{t2}")
    A(f"v_lshlrev_b32 v{t0}, 9, v{t0}")
    A(f"v_lshl_add_u32 v{t0}, v{t1}, 4, v{t0}")
    A(f"v_add_u32 v{vOut}, s{sY}, v{t0}")
    A(f"v_mov_b32 v{vFlagA}, {FLAG}")
    A(f"v_mov_b32 v{vFlag}, 0")
    A(f"ds_write_b32 v{vFlagA}, v{vFlag}")
    for i in range(96): A(f"v_mov_b32 v{i}, 0")
    for r in range(3): A(f"v_mov_b32 v{vL[r]}, 0")
    P.append(W(lgkm=0))
    A("s_barrier", needs=[("Q", 0, r, n) for r in range(3) for n in range(4)])
    P += stamp(cfg, 1)
    def q_read(r, s):
        q, sp = divmod(s, 4)
        return Op(f"ds_read_b128 {a4(aQ(r,s))}, v{vA} offset:{r*KW + q*4224 + sp*32}", tag=("Qr", 0, r, s))
    LA = 2
    def rd(s): return [k_read(s, 1)] + [q_read(r, s) for r in range(3)]
    for s in range(LA): P += rd(s)
    for s in range(16):
        nxt = rd(s + LA) if s + LA < 16 else []
        for r in range(3):
            needs = [("Kr", 1, s)] + [("Qr", 0, rr, s) for rr in range(3)] if r == 0 else []
            A(mfma(v4(vS(r), 16), a4(aK(s)), a4(aQ(r, s)), "0" if s == 0 else v4(vS(r), 16)), needs=needs)
            if r == 0: P += nxt[:2]
            if r == 1: P += nxt[2:]
            if r == 2 and s >= 4:
                q, n = divmod(s - 4, 4)
                if n == 0: A(f"s_mov_b32 m0, s{sKm0[q]}"); A("s_nop 0")
                P.append(k_dma(cfg, q, n, 2, needs=[("Kr", 1, 4*q + i) for i in range(4)]))
    A(f"s_mov_b32 m0, s{sKm0[3]}"); A("s_nop 0")
    for n in range(4): P.append(k_dma(cfg, 3, n, 2, needs=[("Kr", 1, 12 + i) for i in range(4)]))
    A(f"v_add_u32 v{vKdma}, 0x10000, v{vKdma}")
    A("s_nop 7")
    P += stamp(cfg, 2)
    o, M = max_exchange(True)
    P += o
    for p in range(16):
        if p % 4 == 0: A(f"s_mov_b32 m0, s{sVm0[p//4]}"); A("s_nop 0")
        P.append(v_dma(cfg, p, 1))
    A(f"v_add_u32 v{vVdma}, 0x10000, v{vVdma}")
    P += max_gather(M, vFV(0, 0))
    for r in range(3): A(f"v_mov_b32 v{vMc[r]}, v{M[r]}")
    for s in range(4): P.append(k_read(s, 2))
    for r in range(3): P += softmax_stream(r, T0 + 8 * (r % 2))
    P += stamp(cfg, 3)

    G = [[] for _ in range(96)]
    MF = []
    for r in range(3):
        for s in range(16):
            needs = []
            if r == 0 and s % 2 == 0: needs = [("Kr", 1, s), ("Kr", 1, s + 1)]
            MF.append(Op(mfma(v4(vS(r), 16), a4(aK(s)), a4(aQ(r, s)), "0" if s == 0 else v4(vS(r), 16)), needs=needs))
    for kap in range(8):
        b = kap % 2
        for dt in range(2):
            for r in range(3):
                needs = []
                if dt == 0 and r == 0:
                    needs = [("Vr", 0, kap, d, h) for d in range(2) for h in range(2)] + [("Pr", 0, kap, rr) for rr in range(3)]
                MF.append(Op(mfma(v4(vO(dt, r), 16), v4(vFV(b, dt)), v4(vFP(b, r)), v4(vO(dt, r), 16)), needs=needs))
    for s in range(4, 16): G[s - 4].append(k_read(s, 1))
    pw = [(r, s) for r in range(3) for s in range(2)]
    for i, (r, s) in enumerate(pw): G[i].append(p_write(r, s, 0))
    for r in range(3): G[12 + r].append(Op(f"v_add_f32 v{vL[r]}, v{vL[r]}, v{vTs[r]}"))
    for q in range(4):
        G[5 + 4 * q].append(Op(f"s_mov_b32 m0, s{sKm0[q]}"))
        for n in range(4):
            G[6 + 4 * q + n].append(k_dma(cfg, q, n, 2, needs=[("Kr", 1, 4*q + i) for i in range(4)]))
    G[22].append(Op(f"v_add_u32 v{vKdma}, 0x10000, v{vKdma}"))
    G[16].append(Op("s_barrier", needs=[("Pw", 0, r, s) for r, s in pw]))
    def frag_reads(kap):
        b = kap % 2
        return [v_read(v4(vFV(b, 0), 2), kap, 0, 0, 0), v_read(v4(vFV(b, 0) + 2, 2), kap, 0, 1, 0),
                p_read(v4(vFP(b, 0)), kap, 0, 0), p_read(v4(vFP(b, 1)), kap, 1, 0), p_read(v4(vFP(b, 2)), kap, 2, 0),
                v_read(v4(vFV(b, 1), 2), kap, 1, 0, 0), v_read(v4(vFV(b, 1) + 2, 2), kap, 1, 1, 0)]
    for kap in range(8):
        g0 = 42 + 6 * kap
        fr = frag_reads(kap)
        fr[0].needs = [("V", 0, 2 * kap), ("V", 0, 2 * kap + 1)]
        for i, gi in enumerate([0, 0, 1, 1, 2, 2, 3]): G[g0 + gi].append(fr[i])
    for kap in range(8):
        g0 = 48 + 6 * kap
        if kap % 2 == 0: G[g0 + 3].append(Op(f"s_mov_b32 m0, s{sVm0[kap//2]}"))
        for half in range(2):
            G[g0 + 4 + half].append(v_dma(cfg, 2 * kap + half, 1, needs=[("Vr", 0, kap, d, half) for d in range(2)]))
    G[88].append(Op(f"v_max3_f32 v{vA}, v{vTs[0]}, v{vTs[1]}, v{vTs[2]}"))
    G[89].append(Op(f"v_cmp_nge_f32 vcc, s{sTh}, v{vA}"))
    G[89].append(Op("s_cbranch_vccnz L_notify"))
    G[89].append(Op("L_notified:"))
    G[90].append(Op("s_barrier", needs=[("Pr", 0, 7, r) for r in range(3)]))
    G[90].append(Op(f"ds_read_b32 v{vFlag}, v{vFlagA}", tag=("F", 0)))
    for s in range(4): G[91 + s // 2].append(k_read(s, 2))
    G[93].append(Op(f"s_add_u32 s{sT}, s{sT}, 1"))
    G[93].append(Op(f"s_cmp_lt_u32 s{sT}, 7"))
    G[93].append(Op(f"v_cmp_ne_u32 vcc, 0, v{vFlag}", needs=[("F", 0)]))
    G[95].append(Op(f"v_add_u32 v{vVdma}, 0x10000, v{vVdma}"))
    used = [sum(o.cost for o in g) + (4 if MF[(i + 1) % 96].needs else 0) for i, g in enumerate(G)]
    starts = [19, 35, 51]
    last = 87
    gi = 0
    plan = getattr(cfg, "sm_ranges", [(20, 38), (38, 62), (62, 87)])
    for r in range(3):
        st = softmax_stream(r, T0 + 8 * (r % 2))
        lo, hi = plan[r]
        tot = sum(o.cost for o in st)
        free = [max(0, cfg.budget - used[g]) for g in range(lo, hi)]
        ftot = sum(free)
        assert ftot >= tot * 0.9, (r, ftot, tot)
        acc = 0.0; done = 0.0; k = 0
        for g in range(lo, hi):
            acc += tot * free[g - lo] / ftot
            while k < len(st) and done + st[k].cost / 2 <= acc:
                G[g].append(st[k]); used[g] += st[k].cost; done += st[k].cost; k += 1
        while k < len(st):
            G[hi - 1].append(st[k]); used[hi - 1] += st[k].cost; k += 1
    cfg.used = used
    Lp = [Op(".p2align 6"), Op("L_loop:")]
    for g in range(96):
        Lp.append(MF[g]); Lp += G[g]
    Lp.append(Op("s_cbranch_vccnz L_slow"))
    Lp.append(Op("L_slow_ret:"))
    Lp.append(Op("s_cbranch_scc1 L_loop"))

    F = []; A = lambda t, **k: F.append(Op(t, **k))
    F += stamp(cfg, 4)
    for r, s in pw: F.append(p_write(r, s, 0))
    for r in range(3): A(f"v_add_f32 v{vL[r]}, v{vL[r]}, v{vTs[r]}")
    for r in range(3): A(f"ds_write_b32 v{vSx}, v{vL[r]} offset:{3072 + r*1024}", tag=("Lw", 0, r))
    def fV(kap, dt): return (dt * 8 + kap) * 4
    def fP(kap, r): return 64 + (r * 8 + kap) * 4
    def fv_reads(dt, kaps):
        return [v_read(a4(fV(kap, dt) + 2 * half, 2), kap, dt, half, 0) for kap in kaps for half in range(2)]
    F += fv_reads(0, range(0, 3))
    A("s_barrier", needs=[("Pw", 0, r, s) for r, s in pw] + [("Lw", 0, r) for r in range(3)])
    for kap in range(3): F.append(p_read(a4(fP(kap, 0)), kap, 0, 0))
    rest = []
    for kap in range(3, 8):
        rest += fv_reads(0, [kap]) + [p_read(a4(fP(kap, 0)), kap, 0, 0)]
    lb = vFV(0, 0)
    for r in range(3):
        rest.append(Op(f"ds_read_b128 {v4(lb + 8*r)}, v{vSr} offset:{3072 + r*1024}", tag=("Lr", 0, r, 0)))
        rest.append(Op(f"ds_read_b128 {v4(lb + 8*r + 4)}, v{vSr} offset:{3072 + r*1024 + 16}", tag=("Lr", 0, r, 1)))
    for r in (1, 2):
        rest += [p_read(a4(fP(kap, r)), kap, r, 0) for kap in range(8)]
    rest += fv_reads(1, range(8))
    lred = []
    for i in range(7):
        for r in range(3):
            b = lb + 8 * r
            if i == 0: lred.append(Op(f"v_add_f32 v{vL[r]}, v{b}, v{b+1}", needs=[("Lr", 0, rr, x) for rr in range(3) for x in range(2)]))
            else: lred.append(Op(f"v_add_f32 v{vL[r]}, v{vL[r]}, v{b+i+1}"))
    for r in range(3): lred.append(Op(f"v_rcp_f32 v{vL[r]}, v{vL[r]}"))
    def out_ops(dt, r, tb):
        o = []
        b = vO(dt, r)
        for pair in range(2):
            t = tb + 4 * pair
            for i in range(8): o.append(Op(f"v_mul_f32 v{b+8*pair+i}, v{b+8*pair+i}, v{vL[r]}"))
            for i in range(4): o.append(Op(f"v_cvt_pk_bf16_f32 v{t+i}, v{b+8*pair+2*i}, v{b+8*pair+2*i+1}"))
        for pair in range(2):
            t = tb + 4 * pair
            o.append(Op(f"v_permlane32_swap_b32 v{t}, v{t+2}"))
            o.append(Op(f"v_permlane32_swap_b32 v{t+1}, v{t+3}"))
        for pair in range(2):
            t = tb + 4 * pair
            o.append(Op(f"buffer_store_dwordx4 {v4(t)}, v{vOut}, {s4(sO)}, s{sOr[r]} offen offset:{dt*64 + pair*32} {cfg.opol}".rstrip()))
        return o
    tiles = [(0, 0), (0, 1), (0, 2), (1, 0), (1, 1), (1, 2)]
    pend = [(9, o) for o in lred]
    g = 0
    for ti, (dt, r) in enumerate(tiles):
        for kap in range(8):
            A(mfma(v4(vO(dt, r), 16), a4(fV(kap, dt)), a4(fP(kap, r)), v4(vO(dt, r), 16)),
              needs=[("Vr", 0, kap, dt, 0), ("Vr", 0, kap, dt, 1), ("Pr", 0, kap, r)])
            room = 20
            while rest and room >= 8:
                F.append(rest.pop(0)); room -= 6
            while pend and pend[0][0] <= g and room >= pend[0][1].cost:
                room -= pend[0][1].cost; F.append(pend.pop(0)[1])
            g += 1
        pend += [(g + 3, o) for o in out_ops(dt, r, vS(0) + 8 * ti)]
    A("s_nop 7")
    A("s_nop 3")
    F += [o for _, o in pend]
    if cfg.stamps:
        F += stamp(cfg, 5)
        F.append(W(vm=0))
        F += stamp(cfg, 6)
        A("s_memrealtime s[6:7]")
        F.append(W(lgkm=0))
        A(f"s_mov_b32 s{sWS+2}, {256 if cfg.dbg else 0x1000000}"); A(f"s_mov_b32 s{sWS+3}, 0x20000")
        A("v_mov_b32 v0, s34"); A("v_mov_b32 v1, s6")
        for i in range(1, 7):
            A(f"s_sub_u32 s{sX}, s{sSt+2*i}, s{sSt}")
            A(f"v_mov_b32 v{1+i}, s{sX}")
        if cfg.dbg:
            A(f"s_mov_b32 s{sX}, 4096"); A("s_cmp_eq_u32 s2, 0"); A(f"s_cselect_b32 s{sX}, 0, s{sX}")
            A("s_cmp_eq_u32 s2, 200"); A(f"s_cselect_b32 s{sX}, 32, s{sX}")
            A(f"s_lshl_b32 s{sY}, s{sW}, 12"); A(f"s_add_u32 s{sX}, s{sX}, s{sY}")
        else:
            A(f"s_lshl_b32 s{sX}, s2, 7"); A(f"s_lshl_b32 s{sY}, s{sW}, 5"); A(f"s_add_u32 s{sX}, s{sX}, s{sY}")
        A(f"v_mov_b32 v8, s{sX}")
        A(f"v_cmp_eq_u32 vcc, 0, v{vLane}")
        A("s_and_saveexec_b64 s[4:5], vcc")
        A(f"buffer_store_dwordx4 v[0:3], v8, {s4(sWS)}, 0 offen")
        A(f"buffer_store_dwordx4 v[4:7], v8, {s4(sWS)}, 0 offen offset:16")
    A("L_end:")
    A("s_endpgm")

    N = [Op("L_notify:"), Op(f"v_mov_b32 v{vFlag}, 1"), Op(f"ds_write_b32 v{vFlagA}, v{vFlag}"), W(lgkm=0), Op("s_branch L_notified")]
    S = [Op("L_slow:"), W(lgkm=0), Op("s_nop 7"), Op("s_nop 3")]
    o, M = max_exchange(False)
    S += o
    S.append(Op(f"v_mov_b32 v{vFlag}, 0"))
    S.append(Op(f"ds_write_b32 v{vFlagA}, v{vFlag}"))
    S += max_gather(M, vFV(0, 0))
    Fk = [T0 + 19, T0 + 20, T0 + 21]
    for r in range(3): S.append(Op(f"v_sub_f32 v{Fk[r]}, v{vMc[r]}, v{M[r]}"))
    for r in range(3): S.append(Op(f"v_exp_f32 v{Fk[r]}, v{Fk[r]}"))
    for r in range(3): S.append(Op(f"v_mov_b32 v{vMc[r]}, v{M[r]}"))
    for r in range(3): S.append(Op(f"v_mul_f32 v{vL[r]}, v{vL[r]}, v{Fk[r]}"))
    for dt in range(2):
        for r in range(3):
            for i in range(16): S.append(Op(f"v_mul_f32 v{vO(dt,r)+i}, v{vO(dt,r)+i}, v{Fk[r]}"))
    for r in range(3): S += softmax_stream(r, T0 + 8 * (r % 2))
    S.append(Op(f"s_cmp_lt_u32 s{sT}, 7"))
    S.append(Op("s_branch L_slow_ret"))

    trace = [(o, -1) for o in P]
    for t in range(7): trace += [(o, t) for o in Lp]
    trace += [(o, 7) for o in F]
    derive_waits(trace)
    errs = check_hazards(P + Lp + Lp + F) + check_hazards(Lp + S + Lp) + check_hazards(Lp + S + F)
    for e in sorted(set(errs)): print("HAZARD", e, file=sys.stderr)
    assert not errs
    hdr = [l for l in open("standalone__gqa_softmax__near_ridge.s.ref").read().splitlines() if l.startswith(";") and "@launch grid" not in l] if cfg.refhdr else []
    L = header(256, 256, LDS_TOTAL, hdr)
    L += emit(P) + emit(Lp) + emit(F) + emit(N) + emit(S)
    L += footer(512, 256)
    return "\n".join(L) + "\n"

def analyze(w, f):
    import numpy as np
    x = w[:256*4*8].reshape(256, 4, 8).astype(np.int64)
    st = x[:, :, 0]; en = x[:, :, 1]
    t0 = st.min()
    names = ["qk_landed", "qk0_done", "sm0_done", "loop_done", "issue_done", "stores_done"]
    print(f"  span {(en.max()-t0)/100:.2f} us; start spread {(st.max()-t0)/100:.2f}; end min {(en.min()-t0)/100:.2f} med {(np.median(en)-t0)/100:.2f}; clk {np.median(x[:,:,7]/((en-st)/100.0)):.0f} MHz")
    print("  " + "  ".join(f"{n}: {int(np.median(x[:,:,2+i]))} [{x[:,:,2+i].min()}..{x[:,:,2+i].max()}]" for i, n in enumerate(names)))

if __name__ == "__main__":
    cfg = Cfg(); cfg.refhdr = False
    out = sys.argv[1]
    for a in sys.argv[2:]:
        k, v = a.split("=", 1)
        if k in ("stamps", "refhdr", "dbg"): v = bool(int(v))
        elif k in ("budget",): v = int(v)
        elif k in ("thresh",): v = float(v)
        setattr(cfg, k, v)
    open(out, "w").write(build(cfg))
    print("gap costs:", cfg.used, file=sys.stderr)
```

```python
import sys, math, struct
from fw import *
from asmlib import header, footer, NAME

def f2u(x): return struct.unpack("<I", struct.pack("<f", x))[0]

class Cfg:
    kpol = ""
    vpol = ""
    qpol = ""
    opol = ""
    stamps = False
    dbg = False
    spin_at = -1
    spin_us = 0
    budget = 22
    thresh = 65536.0

KW = 16896; KB = 0
VB = 4 * KW; VW = 16384
PB = VB + 4 * VW
SC0 = PB + 24576
SC1 = SC0 + 3072
LDS_TOTAL = SC1 + 3072
FLAG = 1024
assert LDS_TOTAL == 163840

def vO(dt, r): return (dt * 3 + r) * 16
def vS(r): return 96 + 16 * r
def vPk(r, s): return 144 + (r * 2 + s) * 4
def vFV(b, dt): return 168 + 20 * b + 4 * dt
def vFP(b, r): return 168 + 20 * b + 8 + 4 * r
T0 = 208; NT = 24
vKrd, vVrd0, vVrd1, vPrd, vPwr, vKdma, vVdma = 232, 233, 234, 235, 236, 237, 238
vMc = [239, 240, 241]; vL = [242, 243, 244]; vTs = [245, 246, 247]
vSx, vSr, vFlagA, vFlag, vOut, vLane, vA, vB = 248, 249, 250, 251, 252, 253, 254, 255
def aQ(r, s): return (r * 16 + s) * 4
def aK(s): return 192 + 4 * s
sQ, sK, sV, sO = 12, 16, 20, 24
sW, sG, sU, sT, sC, sTh = 28, 29, 30, 31, 32, 33
sKm0 = [36, 37, 38, 39]; sVm0 = [40, 41, 42, 43]
def sKo(q, n): return 44 + q * 4 + n
def sVo(p): return 60 + p
sX, sY, sZ = 76, 77, 78
sOr = [80, 81, 82]
sWS = 84
sSt = 88

def v4(b, n=4): return f"v[{b}:{b+n-1}]"
def a4(b, n=4): return f"a[{b}:{b+n-1}]"
def s4(b): return f"s[{b}:{b+3}]"

def mfma(d, a, b, c): return f"v_mfma_f32_32x32x16_bf16 {d}, {a}, {b}, {c}"

def k_read(s, toff):
    q, sp = divmod(s, 4)
    return Op(f"ds_read_b128 {a4(aK(s))}, v{vKrd} offset:{q*4224 + sp*32}", tag=("Kr", toff, s),
              needs=[("K", toff, q, n) for n in range(4)])
def k_dma(cfg, q, n, toff, needs=()):
    return Op(f"buffer_load_dwordx4 v{vKdma}, {s4(sK)}, s{sKo(q,n)} offen offset:{n*1056} {cfg.kpol} lds".replace("  ", " "),
              tag=("K", toff, q, n), needs=needs)
def v_dma(cfg, p, toff, needs=()):
    return Op(f"buffer_load_dwordx4 v{vVdma}, {s4(sV)}, s{sVo(p)} offen offset:{(p%4)*1024} {cfg.vpol} lds".replace("  ", " "),
              tag=("V", toff, p), needs=needs)
def v_read(dst, kap, dt, half, toff):
    p = 2 * kap + half
    return Op(f"ds_read_b64_tr_b16 {dst}, v{vVrd0 + dt} offset:{p*1024}", tag=("Vr", toff, kap, dt, half), needs=[("V", toff, p)])
def p_read(dst, kap, r, toff):
    return Op(f"ds_read_b128 {dst}, v{vPrd} offset:{(kap*3 + r)*1024}", tag=("Pr", toff, kap, r))
def p_write(r, s, toff):
    return Op(f"ds_write_b128 v{vPwr}, {v4(vPk(r,s))} offset:{(s*3 + r)*1024}", tag=("Pw", toff, r, s))

def softmax_stream(r, tbase):
    ops = []
    def T(e): return tbase + (e % 8)
    fma = lambda e: Op(f"v_fma_f32 v{T(e)}, v{vS(r)+e}, s{sC}, -v{vMc[r]}")
    ex = lambda e: Op(f"v_exp_f32 v{T(e)}, v{T(e)}")
    def add(e):
        if e == 0: return None
        if e == 1: return Op(f"v_add_f32 v{vTs[r]}, v{T(0)}, v{T(1)}")
        return Op(f"v_add_f32 v{vTs[r]}, v{vTs[r]}, v{T(e)}")
    cvt = lambda e: Op(f"v_cvt_pk_bf16_f32 v{vPk(r, e//8) + (e%8)//2}, v{T(e-1)}, v{T(e)}")
    for i in range(-2, 17):
        if 0 <= i + 2 < 16: ops.append(fma(i + 2))
        if 0 <= i + 1 < 16: ops.append(ex(i + 1))
        if 0 <= i - 1 < 16:
            e = i - 1
            a = add(e)
            if a: ops.append(a)
            if e % 2 == 1: ops.append(cvt(e))
    return ops

def max_exchange(first):
    o = []
    M = [T0 + 16, T0 + 17, T0 + 18]
    for i in range(8):
        for r in range(3):
            b = vS(r)
            if i == 0: o.append(Op(f"v_max3_f32 v{M[r]}, v{b}, v{b+1}, v{b+2}"))
            elif i < 7: o.append(Op(f"v_max3_f32 v{M[r]}, v{M[r]}, v{b+2*i+1}, v{b+2*i+2}"))
            else: o.append(Op(f"v_max_f32 v{M[r]}, v{M[r]}, v{b+15}"))
    for r in range(3):
        o.append(Op(f"v_mul_f32 v{M[r]}, s{sC}, v{M[r]}"))
    if not first:
        for r in range(3):
            o.append(Op(f"v_max_f32 v{M[r]}, v{M[r]}, v{vMc[r]}"))
    for r in range(3):
        o.append(Op(f"ds_write_b32 v{vSx}, v{M[r]} offset:{r*1024}"))
    o.append(W(lgkm=0))
    o.append(Op("s_barrier"))
    return o, M

def max_gather(M, base):
    o = []
    for r in range(3):
        o.append(Op(f"ds_read_b128 {v4(base + 8*r)}, v{vSr} offset:{r*1024}"))
        o.append(Op(f"ds_read_b128 {v4(base + 8*r + 4)}, v{vSr} offset:{r*1024 + 16}"))
    o.append(W(lgkm=0))
    for i in range(4):
        for r in range(3):
            b = base + 8 * r
            if i == 0: o.append(Op(f"v_max3_f32 v{M[r]}, v{b}, v{b+1}, v{b+2}"))
            elif i < 3: o.append(Op(f"v_max3_f32 v{M[r]}, v{M[r]}, v{b+2*i+1}, v{b+2*i+2}"))
            else: o.append(Op(f"v_max_f32 v{M[r]}, v{M[r]}, v{b+7}"))
    return o

def stamp(cfg, i):
    if not cfg.stamps: return []
    o = [Op(f"s_memtime s[{sSt + 2*i}:{sSt + 2*i + 1}]")]
    if cfg.spin_at == i:
        o += [Op("s_waitcnt lgkmcnt(0)", "salu"), Op(f"L_spin{i}:"), Op("s_sleep 2"), Op("s_memrealtime s[86:87]"), Op("s_waitcnt lgkmcnt(0)", "salu"),
              Op("s_sub_u32 s86, s86, s34"), Op(f"s_cmp_lt_u32 s86, {cfg.spin_us*100}"), Op(f"s_cbranch_scc1 L_spin{i}")]
    return o

def build(cfg):
    P = []; A = lambda t, **k: P.append(Op(t, **k))
    A("s_cmp_ge_u32 s2, 256"); A("s_cbranch_scc1 L_end")
    if cfg.stamps:
        A("s_memrealtime s[34:35]")
        P += stamp(cfg, 0)
        A(f"s_load_dwordx2 s[{sWS}:{sWS+1}], s[0:1], {32 if cfg.dbg else 40}")
    A("s_load_dwordx8 s[4:11], s[0:1], 0")
    A(f"v_and_b32 v{vLane}, 63, v0")
    A(f"v_lshrrev_b32 v{vA}, 6, v0")
    A(f"s_and_b32 s{sG}, s2, 7")
    A(f"v_readfirstlane_b32 s{sW}, v{vA}")
    A(f"s_lshl_b32 s{sG}, s{sG}, 3"); A(f"s_lshr_b32 s{sX}, s2, 5"); A(f"s_add_u32 s{sG}, s{sG}, s{sX}")
    A(f"s_lshr_b32 s{sU}, s2, 3"); A(f"s_and_b32 s{sU}, s{sU}, 3"); A(f"s_lshl_b32 s{sX}, s{sG}, 2"); A(f"s_add_u32 s{sU}, s{sU}, s{sX}")
    t0, t1, t2, t3 = T0, T0 + 1, T0 + 2, T0 + 3
    A(f"v_lshrrev_b32 v{t0}, 3, v{vLane}")
    A(f"v_lshlrev_b32 v{t0}, 9, v{t0}")
    A(f"v_bfe_u32 v{t1}, v{vLane}, 4, 1")
    A(f"v_and_b32 v{t2}, 7, v{vLane}")
    A(f"v_xor_b32 v{t3}, v{t2}, v{t1}")
    A(f"v_lshl_add_u32 v{vKdma}, v{t3}, 4, v{t0}")
    A(f"v_lshlrev_b32 v{t1}, 2, v{t1}")
    A(f"v_xor_b32 v{t3}, v{t2}, v{t1}")
    A(f"v_lshl_add_u32 v{vVdma}, v{t3}, 4, v{t0}")
    A(f"s_mul_i32 s{sY}, s{sU}, 49152")
    A(f"s_lshl_b32 s{sX}, s{sW}, 7")
    A(f"s_add_u32 s{sY}, s{sY}, s{sX}")
    A(f"v_add_u32 v{vB}, s{sY}, v{vKdma}")
    A(f"s_lshl_b32 s{sZ}, s{sG}, 19")
    A(f"s_add_u32 s{sX}, s{sX}, s{sZ}")
    A(f"v_add_u32 v{vVdma}, s{sX}, v{vVdma}")
    A(f"s_lshl_b32 s{sX}, s{sW}, 14")
    A(f"s_add_u32 s{sX}, s{sX}, s{sZ}")
    A(f"v_add_u32 v{vKdma}, s{sX}, v{vKdma}")
    for q in range(4):
        for n in range(4):
            A(f"s_mov_b32 s{sKo(q,n)}, {n*3040 + q*128}")
    A(f"s_mul_i32 s{sX}, s{sW}, {KW}")
    for q in range(4): A(f"s_add_u32 s{sKm0[q]}, s{sX}, {KB + q*4224}")
    A(f"s_mul_i32 s{sVm0[0]}, s{sW}, 4224")
    P.append(W(lgkm=0))
    A(f"s_mov_b32 s{sQ}, s4"); A(f"s_mov_b32 s{sQ+1}, s5"); A(f"s_mov_b32 s{sQ+2}, 12582912"); A(f"s_mov_b32 s{sQ+3}, 0x20000")
    A(f"s_add_u32 s{sK+2}, s{sZ}, 524288")
    A(f"s_mov_b32 s{sK}, s6"); A(f"s_mov_b32 s{sK+1}, s7"); A(f"s_mov_b32 s{sK+3}, 0x20000")
    for r in range(3):
        A(f"s_add_u32 m0, s{sVm0[0]}, {VB + r*KW}")
        if r > 0: A(f"v_add_u32 v{vB}, 0x4000, v{vB}")
        else: A("s_nop 0")
        for n in range(4):
            A(f"buffer_load_dwordx4 v{vB}, {s4(sQ)}, s{sKo(0,n)} offen offset:{n*1056} {cfg.qpol} lds".replace("  ", " "), tag=("Q", 0, r, n))
    for q in range(4):
        A(f"s_mov_b32 m0, s{sKm0[q]}")
        A("s_nop 0")
        for n in range(4): P.append(k_dma(cfg, q, n, 1))
    A(f"v_add_u32 v{vKdma}, 0x10000, v{vKdma}")
    A(f"s_mov_b32 s{sV}, s8"); A(f"s_mov_b32 s{sV+1}, s9"); A(f"s_mov_b32 s{sV+2}, 33554432"); A(f"s_mov_b32 s{sV+3}, 0x20000")
    A(f"s_mov_b32 s{sO}, s10"); A(f"s_mov_b32 s{sO+1}, s11"); A(f"s_mov_b32 s{sO+2}, 12582912"); A(f"s_mov_b32 s{sO+3}, 0x20000")
    for p in range(16): A(f"s_mov_b32 s{sVo(p)}, {(p//4)*16384 + (p%4)*3072}")
    A(f"s_lshl_b32 s{sX}, s{sW}, 14")
    for b in range(4): A(f"s_add_u32 s{sVm0[b]}, s{sX}, {VB + b*4096}")
    for r in range(3): A(f"s_mov_b32 s{sOr[r]}, {r*16384}")
    A(f"s_mov_b32 s{sC}, {hex(f2u(math.log2(math.e) / 16.0))}")
    A(f"s_mov_b32 s{sTh}, {hex(f2u(cfg.thresh))}")
    A(f"s_mov_b32 s{sT}, 0")
    A(f"v_bfe_u32 v{t0}, v{vLane}, 3, 2")
    A(f"v_mul_u32_u24 v{t0}, 1056, v{t0}")
    A(f"v_and_b32 v{t1}, 7, v{vLane}")
    A(f"v_lshl_add_u32 v{t0}, v{t1}, 7, v{t0}")
    A(f"v_lshrrev_b32 v{t1}, 5, v{vLane}")
    A(f"v_bfe_u32 v{t2}, v{vLane}, 1, 1")
    A(f"v_xor_b32 v{t2}, v{t2}, v{t1}")
    A(f"v_lshl_add_u32 v{t0}, v{t2}, 4, v{t0}")
    A(f"v_add_u32 v{vA}, {VB}, v{t0}")
    A(f"v_add_u32 v{vKrd}, s{sKm0[0]}, v{t0}")
    A(f"v_bfe_u32 v{t0}, v{vLane}, 2, 2")
    A(f"v_lshl_add_u32 v{t0}, v{t1}, 2, v{t0}")
    A(f"v_lshlrev_b32 v{t0}, 7, v{t0}")
    A(f"v_bfe_u32 v{t2}, v{vLane}, 3, 1")
    A(f"v_lshl_add_u32 v{t0}, v{t2}, 6, v{t0}")
    A(f"v_bfe_u32 v{t2}, v{vLane}, 4, 1")
    A(f"v_lshl_add_u32 v{t0}, v{t2}, 5, v{t0}")
    A(f"v_and_b32 v{t2}, 3, v{vLane}")
    A(f"v_lshl_add_u32 v{t0}, v{t2}, 3, v{t0}")
    A(f"v_add_u32 v{vVrd0}, s{sVm0[0]}, v{t0}")
    A(f"v_xor_b32 v{vVrd1}, 64, v{vVrd0}")
    A(f"v_lshlrev_b32 v{t0}, 4, v{vLane}")
    A(f"v_add_u32 v{vPrd}, {PB}, v{t0}")
    A(f"s_mul_i32 s{sX}, s{sW}, 6144")
    A(f"v_add_u32 v{vPwr}, s{sX}, v{vPrd}")
    A(f"v_and_b32 v{t0}, 31, v{vLane}")
    A(f"v_lshlrev_b32 v{t2}, 5, v{t0}")
    A(f"v_add_u32 v{vSr}, {SC0}, v{t2}")
    A(f"s_lshl_b32 s{sX}, s{sW}, 3")
    A(f"v_lshl_add_u32 v{t2}, v{t1}, 2, v{vSr}")
    A(f"v_add_u32 v{vSx}, s{sX}, v{t2}")
    A(f"v_lshlrev_b32 v{t0}, 9, v{t0}")
    A(f"v_lshl_add_u32 v{t0}, v{t1}, 4, v{t0}")
    A(f"v_add_u32 v{vOut}, s{sY}, v{t0}")
    A(f"v_mov_b32 v{vFlagA}, {FLAG}")
    A(f"v_mov_b32 v{vFlag}, 0")
    A(f"ds_write_b32 v{vFlagA}, v{vFlag}")
    for i in range(96): A(f"v_mov_b32 v{i}, 0")
    for r in range(3): A(f"v_mov_b32 v{vL[r]}, 0")
    P.append(W(lgkm=0))
    A("s_barrier", needs=[("Q", 0, r, n) for r in range(3) for n in range(4)])
    P += stamp(cfg, 1)
    def q_read(r, s):
        q, sp = divmod(s, 4)
        return Op(f"ds_read_b128 {a4(aQ(r,s))}, v{vA} offset:{r*KW + q*4224 + sp*32}", tag=("Qr", 0, r, s))
    LA = 2
    def rd(s): return [k_read(s, 1)] + [q_read(r, s) for r in range(3)]
    for s in range(LA): P += rd(s)
    for s in range(16):
        nxt = rd(s + LA) if s + LA < 16 else []
        for r in range(3):
            needs = [("Kr", 1, s)] + [("Qr", 0, rr, s) for rr in range(3)] if r == 0 else []
            A(mfma(v4(vS(r), 16), a4(aK(s)), a4(aQ(r, s)), "0" if s == 0 else v4(vS(r), 16)), needs=needs)
            if r == 0: P += nxt[:2]
            if r == 1: P += nxt[2:]
            if r == 2 and s >= 4:
                q, n = divmod(s - 4, 4)
                if n == 0: A(f"s_mov_b32 m0, s{sKm0[q]}"); A("s_nop 0")
                P.append(k_dma(cfg, q, n, 2, needs=[("Kr", 1, 4*q + i) for i in range(4)]))
    A(f"s_mov_b32 m0, s{sKm0[3]}"); A("s_nop 0")
    for n in range(4): P.append(k_dma(cfg, 3, n, 2, needs=[("Kr", 1, 12 + i) for i in range(4)]))
    A(f"v_add_u32 v{vKdma}, 0x10000, v{vKdma}")
    A("s_nop 7")
    P += stamp(cfg, 2)
    o, M = max_exchange(True)
    P += o
    for p in range(16):
        if p % 4 == 0: A(f"s_mov_b32 m0, s{sVm0[p//4]}"); A("s_nop 0")
        P.append(v_dma(cfg, p, 1))
    A(f"v_add_u32 v{vVdma}, 0x10000, v{vVdma}")
    P += max_gather(M, vFV(0, 0))
    for r in range(3): A(f"v_mov_b32 v{vMc[r]}, v{M[r]}")
    for s in range(4): P.append(k_read(s, 2))
    for r in range(3): P += softmax_stream(r, T0 + 8 * (r % 2))
    P += stamp(cfg, 3)

    G = [[] for _ in range(96)]
    MF = []
    for r in range(3):
        for s in range(16):
            needs = []
            if r == 0 and s % 2 == 0: needs = [("Kr", 1, s), ("Kr", 1, s + 1)]
            MF.append(Op(mfma(v4(vS(r), 16), a4(aK(s)), a4(aQ(r, s)), "0" if s == 0 else v4(vS(r), 16)), needs=needs))
    for kap in range(8):
        b = kap % 2
        for dt in range(2):
            for r in range(3):
                needs = []
                if dt == 0 and r == 0:
                    needs = [("Vr", 0, kap, d, h) for d in range(2) for h in range(2)] + [("Pr", 0, kap, rr) for rr in range(3)]
                MF.append(Op(mfma(v4(vO(dt, r), 16), v4(vFV(b, dt)), v4(vFP(b, r)), v4(vO(dt, r), 16)), needs=needs))
    for s in range(4, 16): G[s - 4].append(k_read(s, 1))
    pw = [(r, s) for r in range(3) for s in range(2)]
    for i, (r, s) in enumerate(pw): G[i].append(p_write(r, s, 0))
    for r in range(3): G[12 + r].append(Op(f"v_add_f32 v{vL[r]}, v{vL[r]}, v{vTs[r]}"))
    for q in range(4):
        G[5 + 4 * q].append(Op(f"s_mov_b32 m0, s{sKm0[q]}"))
        for n in range(4):
            G[6 + 4 * q + n].append(k_dma(cfg, q, n, 2, needs=[("Kr", 1, 4*q + i) for i in range(4)]))
    G[22].append(Op(f"v_add_u32 v{vKdma}, 0x10000, v{vKdma}"))
    G[16].append(Op("s_barrier", needs=[("Pw", 0, r, s) for r, s in pw]))
    def frag_reads(kap):
        b = kap % 2
        return [v_read(v4(vFV(b, 0), 2), kap, 0, 0, 0), v_read(v4(vFV(b, 0) + 2, 2), kap, 0, 1, 0),
                p_read(v4(vFP(b, 0)), kap, 0, 0), p_read(v4(vFP(b, 1)), kap, 1, 0), p_read(v4(vFP(b, 2)), kap, 2, 0),
                v_read(v4(vFV(b, 1), 2), kap, 1, 0, 0), v_read(v4(vFV(b, 1) + 2, 2), kap, 1, 1, 0)]
    for kap in range(8):
        g0 = 42 + 6 * kap
        fr = frag_reads(kap)
        fr[0].needs = [("V", 0, 2 * kap), ("V", 0, 2 * kap + 1)]
        for i, gi in enumerate([0, 0, 1, 1, 2, 2, 3]): G[g0 + gi].append(fr[i])
    for kap in range(8):
        g0 = 48 + 6 * kap
        if kap % 2 == 0: G[g0 + 3].append(Op(f"s_mov_b32 m0, s{sVm0[kap//2]}"))
        for half in range(2):
            G[g0 + 4 + half].append(v_dma(cfg, 2 * kap + half, 1, needs=[("Vr", 0, kap, d, half) for d in range(2)]))
    G[88].append(Op(f"v_max3_f32 v{vA}, v{vTs[0]}, v{vTs[1]}, v{vTs[2]}"))
    G[89].append(Op(f"v_cmp_nge_f32 vcc, s{sTh}, v{vA}"))
    G[89].append(Op("s_cbranch_vccnz L_notify"))
    G[89].append(Op("L_notified:"))
    G[90].append(Op("s_barrier", needs=[("Pr", 0, 7, r) for r in range(3)]))
    G[90].append(Op(f"ds_read_b32 v{vFlag}, v{vFlagA}", tag=("F", 0)))
    for s in range(4): G[91 + s // 2].append(k_read(s, 2))
    G[93].append(Op(f"s_add_u32 s{sT}, s{sT}, 1"))
    G[93].append(Op(f"s_cmp_lt_u32 s{sT}, 7"))
    G[93].append(Op(f"v_cmp_ne_u32 vcc, 0, v{vFlag}", needs=[("F", 0)]))
    G[95].append(Op(f"v_add_u32 v{vVdma}, 0x10000, v{vVdma}"))
    used = [sum(o.cost for o in g) + (4 if MF[(i + 1) % 96].needs else 0) for i, g in enumerate(G)]
    starts = [19, 35, 51]
    last = 87
    gi = 0
    plan = getattr(cfg, "sm_ranges", [(20, 38), (38, 62), (62, 87)])
    for r in range(3):
        st = softmax_stream(r, T0 + 8 * (r % 2))
        lo, hi = plan[r]
        tot = sum(o.cost for o in st)
        free = [max(0, cfg.budget - used[g]) for g in range(lo, hi)]
        ftot = sum(free)
        assert ftot >= tot * 0.9, (r, ftot, tot)
        acc = 0.0; done = 0.0; k = 0
        for g in range(lo, hi):
            acc += tot * free[g - lo] / ftot
            while k < len(st) and done + st[k].cost / 2 <= acc:
                G[g].append(st[k]); used[g] += st[k].cost; done += st[k].cost; k += 1
        while k < len(st):
            G[hi - 1].append(st[k]); used[hi - 1] += st[k].cost; k += 1
    cfg.used = used
    Lp = [Op(".p2align 6"), Op("L_loop:")]
    for g in range(96):
        Lp.append(MF[g]); Lp += G[g]
    Lp.append(Op("s_cbranch_vccnz L_slow"))
    Lp.append(Op("L_slow_ret:"))
    Lp.append(Op("s_cbranch_scc1 L_loop"))

    F = []; A = lambda t, **k: F.append(Op(t, **k))
    F += stamp(cfg, 4)
    for r, s in pw: F.append(p_write(r, s, 0))
    for r in range(3): A(f"v_add_f32 v{vL[r]}, v{vL[r]}, v{vTs[r]}")
    for r in range(3): A(f"ds_write_b32 v{vSx}, v{vL[r]} offset:{3072 + r*1024}", tag=("Lw", 0, r))
    def fV(kap, dt): return (dt * 8 + kap) * 4
    def fP(kap, r): return 64 + (r * 8 + kap) * 4
    def fv_reads(dt, kaps):
        return [v_read(a4(fV(kap, dt) + 2 * half, 2), kap, dt, half, 0) for kap in kaps for half in range(2)]
    F += fv_reads(0, range(0, 3))
    A("s_barrier", needs=[("Pw", 0, r, s) for r, s in pw] + [("Lw", 0, r) for r in range(3)])
    for kap in range(3): F.append(p_read(a4(fP(kap, 0)), kap, 0, 0))
    rest = []
    for kap in range(3, 8):
        rest += fv_reads(0, [kap]) + [p_read(a4(fP(kap, 0)), kap, 0, 0)]
    lb = vFV(0, 0)
    for r in range(3):
        rest.append(Op(f"ds_read_b128 {v4(lb + 8*r)}, v{vSr} offset:{3072 + r*1024}", tag=("Lr", 0, r, 0)))
        rest.append(Op(f"ds_read_b128 {v4(lb + 8*r + 4)}, v{vSr} offset:{3072 + r*1024 + 16}", tag=("Lr", 0, r, 1)))
    for r in (1, 2):
        rest += [p_read(a4(fP(kap, r)), kap, r, 0) for kap in range(8)]
    rest += fv_reads(1, range(8))
    lred = []
    for i in range(7):
        for r in range(3):
            b = lb + 8 * r
            if i == 0: lred.append(Op(f"v_add_f32 v{vL[r]}, v{b}, v{b+1}", needs=[("Lr", 0, rr, x) for rr in range(3) for x in range(2)]))
            else: lred.append(Op(f"v_add_f32 v{vL[r]}, v{vL[r]}, v{b+i+1}"))
    for r in range(3): lred.append(Op(f"v_rcp_f32 v{vL[r]}, v{vL[r]}"))
    def out_ops(dt, r, tb):
        o = []
        b = vO(dt, r)
        for pair in range(2):
            t = tb + 4 * pair
            for i in range(8): o.append(Op(f"v_mul_f32 v{b+8*pair+i}, v{b+8*pair+i}, v{vL[r]}"))
            for i in range(4): o.append(Op(f"v_cvt_pk_bf16_f32 v{t+i}, v{b+8*pair+2*i}, v{b+8*pair+2*i+1}"))
        for pair in range(2):
            t = tb + 4 * pair
            o.append(Op(f"v_permlane32_swap_b32 v{t}, v{t+2}"))
            o.append(Op(f"v_permlane32_swap_b32 v{t+1}, v{t+3}"))
        for pair in range(2):
            t = tb + 4 * pair
            o.append(Op(f"buffer_store_dwordx4 {v4(t)}, v{vOut}, {s4(sO)}, s{sOr[r]} offen offset:{dt*64 + pair*32} {cfg.opol}".rstrip()))
        return o
    tiles = [(0, 0), (0, 1), (0, 2), (1, 0), (1, 1), (1, 2)]
    pend = [(9, o) for o in lred]
    g = 0
    for ti, (dt, r) in enumerate(tiles):
        for kap in range(8):
            A(mfma(v4(vO(dt, r), 16), a4(fV(kap, dt)), a4(fP(kap, r)), v4(vO(dt, r), 16)),
              needs=[("Vr", 0, kap, dt, 0), ("Vr", 0, kap, dt, 1), ("Pr", 0, kap, r)])
            room = 20
            while rest and room >= 8:
                F.append(rest.pop(0)); room -= 6
            while pend and pend[0][0] <= g and room >= pend[0][1].cost:
                room -= pend[0][1].cost; F.append(pend.pop(0)[1])
            g += 1
        pend += [(g + 3, o) for o in out_ops(dt, r, vS(0) + 8 * ti)]
    A("s_nop 7")
    A("s_nop 3")
    F += [o for _, o in pend]
    if cfg.stamps:
        F += stamp(cfg, 5)
        F.append(W(vm=0))
        F += stamp(cfg, 6)
        A("s_memrealtime s[6:7]")
        F.append(W(lgkm=0))
        A(f"s_mov_b32 s{sWS+2}, {256 if cfg.dbg else 0x1000000}"); A(f"s_mov_b32 s{sWS+3}, 0x20000")
        A("v_mov_b32 v0, s34"); A("v_mov_b32 v1, s6")
        for i in range(1, 7):
            A(f"s_sub_u32 s{sX}, s{sSt+2*i}, s{sSt}")
            A(f"v_mov_b32 v{1+i}, s{sX}")
        if cfg.dbg:
            A(f"s_mov_b32 s{sX}, 4096"); A("s_cmp_eq_u32 s2, 0"); A(f"s_cselect_b32 s{sX}, 0, s{sX}")
            A("s_cmp_eq_u32 s2, 200"); A(f"s_cselect_b32 s{sX}, 32, s{sX}")
            A(f"s_lshl_b32 s{sY}, s{sW}, 12"); A(f"s_add_u32 s{sX}, s{sX}, s{sY}")
        else:
            A(f"s_lshl_b32 s{sX}, s2, 7"); A(f"s_lshl_b32 s{sY}, s{sW}, 5"); A(f"s_add_u32 s{sX}, s{sX}, s{sY}")
        A(f"v_mov_b32 v8, s{sX}")
        A(f"v_cmp_eq_u32 vcc, 0, v{vLane}")
        A("s_and_saveexec_b64 s[4:5], vcc")
        A(f"buffer_store_dwordx4 v[0:3], v8, {s4(sWS)}, 0 offen")
        A(f"buffer_store_dwordx4 v[4:7], v8, {s4(sWS)}, 0 offen offset:16")
    A("L_end:")
    A("s_endpgm")

    N = [Op("L_notify:"), Op(f"v_mov_b32 v{vFlag}, 1"), Op(f"ds_write_b32 v{vFlagA}, v{vFlag}"), W(lgkm=0), Op("s_branch L_notified")]
    S = [Op("L_slow:"), W(lgkm=0), Op("s_nop 7"), Op("s_nop 3")]
    o, M = max_exchange(False)
    S += o
    S.append(Op(f"v_mov_b32 v{vFlag}, 0"))
    S.append(Op(f"ds_write_b32 v{vFlagA}, v{vFlag}"))
    S += max_gather(M, vFV(0, 0))
    Fk = [T0 + 19, T0 + 20, T0 + 21]
    for r in range(3): S.append(Op(f"v_sub_f32 v{Fk[r]}, v{vMc[r]}, v{M[r]}"))
    for r in range(3): S.append(Op(f"v_exp_f32 v{Fk[r]}, v{Fk[r]}"))
    for r in range(3): S.append(Op(f"v_mov_b32 v{vMc[r]}, v{M[r]}"))
    for r in range(3): S.append(Op(f"v_mul_f32 v{vL[r]}, v{vL[r]}, v{Fk[r]}"))
    for dt in range(2):
        for r in range(3):
            for i in range(16): S.append(Op(f"v_mul_f32 v{vO(dt,r)+i}, v{vO(dt,r)+i}, v{Fk[r]}"))
    for r in range(3): S += softmax_stream(r, T0 + 8 * (r % 2))
    S.append(Op(f"s_cmp_lt_u32 s{sT}, 7"))
    S.append(Op("s_branch L_slow_ret"))

    trace = [(o, -1) for o in P]
    for t in range(7): trace += [(o, t) for o in Lp]
    trace += [(o, 7) for o in F]
    derive_waits(trace)
    errs = check_hazards(P + Lp + Lp + F) + check_hazards(Lp + S + Lp) + check_hazards(Lp + S + F)
    for e in sorted(set(errs)): print("HAZARD", e, file=sys.stderr)
    assert not errs
    hdr = [l for l in open("standalone__gqa_softmax__near_ridge.s.ref").read().splitlines() if l.startswith(";") and "@launch grid" not in l] if cfg.refhdr else []
    L = header(256, 256, LDS_TOTAL, hdr)
    L += emit(P) + emit(Lp) + emit(F) + emit(N) + emit(S)
    L += footer(512, 256)
    return "\n".join(L) + "\n"

def analyze(w, f):
    import numpy as np
    x = w[:256*4*8].reshape(256, 4, 8).astype(np.int64)
    st = x[:, :, 0]; en = x[:, :, 1]
    t0 = st.min()
    names = ["qk_landed", "qk0_done", "sm0_done", "loop_done", "issue_done", "stores_done"]
    print(f"  span {(en.max()-t0)/100:.2f} us; start spread {(st.max()-t0)/100:.2f}; end min {(en.min()-t0)/100:.2f} med {(np.median(en)-t0)/100:.2f}; clk {np.median(x[:,:,7]/((en-st)/100.0)):.0f} MHz")
    print("  " + "  ".join(f"{n}: {int(np.median(x[:,:,2+i]))} [{x[:,:,2+i].min()}..{x[:,:,2+i].max()}]" for i, n in enumerate(names)))

if __name__ == "__main__":
    cfg = Cfg(); cfg.refhdr = False
    out = sys.argv[1]
    for a in sys.argv[2:]:
        k, v = a.split("=", 1)
        if k in ("stamps", "refhdr", "dbg"): v = bool(int(v))
        elif k in ("budget", "spin_at", "spin_us"): v = int(v)
        elif k in ("thresh",): v = float(v)
        setattr(cfg, k, v)
    open(out, "w").write(build(cfg))
    print("gap costs:", cfg.used, file=sys.stderr)
```

```python
import re

class Op:
    __slots__ = ("text", "kind", "tag", "needs", "cost", "wait", "drain", "gap")
    def __init__(self, text, kind=None, tag=None, needs=(), cost=None, drain=None):
        self.text = text
        self.kind = kind or classify(text)
        self.tag = tag
        self.needs = list(needs)
        self.cost = cost if cost is not None else COST.get(self.kind, 4)
        self.wait = None
        self.drain = drain

COST = {"mfma": 8, "valu": 4, "trans": 8, "salu": 4, "dsr": 4, "dsw": 20, "dma": 8, "vld": 8, "vst": 13,
        "bar": 9, "wait": 4, "label": 0, "branch": 4, "nop": 4, "smem": 4, "dir": 0}

TRANS = ("v_exp_f32", "v_log_f32", "v_rcp_f32", "v_rsq_f32", "v_sqrt_f32")
def classify(t):
    m = t.split()[0]
    if m.endswith(":"): return "label"
    if m.startswith("."): return "dir"
    if m.startswith(";"): return "dir"
    if m.startswith("v_mfma"): return "mfma"
    if m in TRANS: return "trans"
    if m.startswith("v_"): return "valu"
    if m.startswith("ds_read"): return "dsr"
    if m.startswith("ds_"): return "dsw"
    if m.startswith("buffer_load") or m.startswith("global_load"):
        return "dma" if t.rstrip().endswith("lds") else "vld"
    if m.startswith("buffer_store") or m.startswith("global_store"): return "vst"
    if m == "s_barrier": return "bar"
    if m == "s_waitcnt": return "wait"
    if m == "s_nop": return "nop"
    if m.startswith("s_cbranch") or m == "s_branch": return "branch"
    if m.startswith("s_load") or m.startswith("s_mem"): return "smem"
    if m.startswith("s_"): return "salu"
    raise ValueError(t)

def W(vm=None, lgkm=None):
    parts = []
    if vm is not None: parts.append(f"vmcnt({vm})")
    if lgkm is not None: parts.append(f"lgkmcnt({lgkm})")
    return Op("s_waitcnt " + " ".join(parts), "wait", drain=dict(vm=vm, lgkm=lgkm))

def Need(needs):
    return Op("; need", "pseudo", needs=needs, cost=0)

def dyn(tag, t):
    return (tag[0], tag[1] + t) + tuple(tag[2:])

VMK = ("dma", "vld", "vst")
LGK = ("dsr", "dsw")

def derive_waits(trace):
    req = {}
    nv = nl = 0; dv = dl = 0
    pos = {}
    def mn(a, b):
        return b if a is None else (a if b is None else min(a, b))
    for op, t in trace:
        if op.drain:
            if isinstance(op.drain.get("vm"), tuple):
                q, i = pos[dyn(op.drain["vm"][1], t)]
                op.drain["vm"] = nv - 1 - i
                op.text = "s_waitcnt " + " ".join(x for x in [f"vmcnt({op.drain['vm']})", f"lgkmcnt({op.drain['lgkm']})" if op.drain.get("lgkm") is not None else ""] if x)
            if op.drain.get("vm") is not None: dv = max(dv, nv - op.drain["vm"])
            if op.drain.get("lgkm") is not None: dl = max(dl, nl - op.drain["lgkm"])
        if op.needs:
            vm = lg = None
            for n in op.needs:
                d = dyn(n, t)
                if d not in pos and d[0] in ("Vr", "Kr") and d[1] < 0: continue
                if d not in pos:
                    raise KeyError(f"need {d} never produced before: {op.text}")
                q, i = pos[d]
                if q == "vm":
                    if i >= dv: vm = mn(vm, nv - 1 - i)
                else:
                    if i >= dl: lg = mn(lg, nl - 1 - i)
            r = req.get(id(op), (None, None))
            req[id(op)] = (mn(r[0], vm), mn(r[1], lg))
        if op.kind in VMK:
            if op.tag: pos[dyn(op.tag, t)] = ("vm", nv)
            nv += 1
        elif op.kind in LGK:
            if op.tag: pos[dyn(op.tag, t)] = ("lg", nl)
            nl += 1
    statics = []
    seen = set()
    for op, t in trace:
        if id(op) in req and id(op) not in seen:
            seen.add(id(op)); statics.append(op)
            vm, lg = req[id(op)]
            if vm is not None: vm = min(vm, 63)
            if lg is not None: lg = min(lg, 15)
            op.wait = [vm, lg]
    def ok():
        nv = nl = 0; dv = dl = 0
        pos = {}
        for op, t in trace:
            w = op.wait
            if op.drain: w = [op.drain.get("vm"), op.drain.get("lgkm")]
            if w:
                if w[0] is not None: dv = max(dv, nv - w[0])
                if w[1] is not None: dl = max(dl, nl - w[1])
            for n in op.needs:
                if dyn(n, t) not in pos: continue
                q, i = pos[dyn(n, t)]
                if q == "vm" and i >= dv: return False
                if q == "lg" and i >= dl: return False
            if op.kind in VMK:
                if op.tag: pos[dyn(op.tag, t)] = ("vm", nv)
                nv += 1
            elif op.kind in LGK:
                if op.tag: pos[dyn(op.tag, t)] = ("lg", nl)
                nl += 1
        return True
    assert ok()
    for op in sorted(statics, key=lambda o: o.kind == "pseudo"):
        for k in (0, 1):
            if op.wait[k] is not None:
                s = op.wait[k]; op.wait[k] = None
                if not ok(): op.wait[k] = s
    for op in statics:
        if op.wait == [None, None]: op.wait = None

def emit(ops):
    out = []
    for op in ops:
        if op.wait:
            parts = []
            if op.wait[0] is not None: parts.append(f"vmcnt({op.wait[0]})")
            if op.wait[1] is not None: parts.append(f"lgkmcnt({op.wait[1]})")
            out.append("    s_waitcnt " + " ".join(parts))
        if op.kind == "pseudo": continue
        out.append(("" if op.kind in ("label", "dir") else "    ") + op.text)
    return out

REG = re.compile(r"\b([vas])(?:(\d+)|\[(\d+):(\d+)\])")
def regs(s):
    out = set()
    for m in REG.finditer(s):
        f = m.group(1)
        if m.group(2) is not None: out.add((f, int(m.group(2))))
        else: out.update((f, i) for i in range(int(m.group(3)), int(m.group(4)) + 1))
    if re.search(r"\bvcc\b", s): out.add(("s", "vcc"))
    if re.search(r"\bm0\b", s): out.add(("s", "m0"))
    if re.search(r"\bexec\b", s): out.add(("s", "exec"))
    return out

def rw(op):
    t = op.text.split(";")[0].strip()
    parts = t.split(None, 1)
    mn = parts[0]
    ops = [x.strip() for x in parts[1].split(",")] if len(parts) > 1 else []
    k = op.kind
    R, Wr, C = set(), set(), set()
    if k == "mfma":
        Wr = regs(ops[0]); R = regs(ops[1]) | regs(ops[2]); C = regs(ops[3])
    elif k in ("valu", "trans"):
        Wr = regs(ops[0])
        for o in ops[1:]: R |= regs(o)
        if mn.startswith("v_fmac") or mn.startswith("v_permlane") or mn.startswith("v_swap"): R |= regs(ops[0])
        if mn.startswith("v_permlane") or mn.startswith("v_swap"): Wr |= regs(ops[1])
    elif k == "dsr":
        Wr = regs(ops[0]); R = regs(ops[1])
    elif k == "dsw":
        for o in ops: R |= regs(o)
    elif k == "dma":
        for o in ops: R |= regs(o)
        R.add(("s", "m0"))
    elif k == "vld":
        Wr = regs(ops[0])
        for o in ops[1:]: R |= regs(o)
    elif k == "vst":
        for o in ops: R |= regs(o)
    elif k in ("salu", "smem"):
        if mn.startswith("s_cmp") or mn.startswith("s_bitcmp") or mn in ("s_setprio", "s_endpgm", "s_sleep"):
            for o in ops: R |= regs(o)
        elif ops:
            Wr = regs(ops[0])
            for o in ops[1:]: R |= regs(o)
            if "saveexec" in mn: Wr.add(("s", "exec"))
    elif k == "branch":
        if "vcc" in mn: R.add(("s", "vcc"))
    return mn, R, Wr, C

def check_hazards(seq):
    lin = []
    for op in seq:
        if op.kind in ("label", "dir"): continue
        if op.wait: lin.append(Op("s_waitcnt x", "wait"))
        if op.kind == "pseudo": continue
        lin.append(op)
    info = [rw(op) for op in lin]
    slots = [(int(op.text.split()[1]) + 1 if op.kind == "nop" else 1) for op in lin]
    errs = []
    for j, op in enumerate(lin):
        mn, R, Wr, C = info[j]
        dist = 0; nm = 0
        for i in range(j - 1, max(-1, j - 24), -1):
            if nm >= 3: break
            p = lin[i]; pm, pR, pW, pC = info[i]
            need = 0
            isval = op.kind in ("valu", "trans")
            if p.kind == "mfma":
                passes8 = "32x32" in pm
                if isval and (pW & (R | Wr)): need = 12 if passes8 else 8
                if op.kind in ("dsw", "vst", "dma", "dsr", "vld") and (pW & (R | Wr)): need = 12 if passes8 else 8
                if op.kind == "mfma":
                    if pW & R: need = 12 if passes8 else 8
                    if (pW & C) and pW != C: need = max(need, 10 if passes8 else 6)
                    if (pW & Wr) and pW != C: need = max(need, 10 if passes8 else 6)
                if isval and (pC & Wr): need = max(need, 7 if passes8 else 3)
            if p.kind in ("valu", "trans"):
                if op.kind == "mfma" and (pW & (R | C)): need = max(need, 2)
                if p.kind == "trans" and op.kind == "valu" and (pW & R): need = max(need, 1)
                if mn.startswith("v_permlane") and (pW & R): need = max(need, 2)
                if mn.startswith("v_readfirstlane") or mn.startswith("v_readlane"):
                    if pW & R: need = max(need, 1)
                sw = {x for x in pW if x[0] == "s"}
                if sw:
                    if isval and (sw & R): need = max(need, 2)
                    if op.kind in ("dma", "vld", "vst") and (sw & R): need = max(need, 5)
            if p.kind == "salu" and ("s", "m0") in pW and op.kind == "dma": need = max(need, 1)
            if p.kind == "vst" and ("x4" in pm or "x3" in pm) and isval:
                data = regs(p.text.split(None, 1)[1].split(",")[0])
                if data & Wr: need = max(need, 2)
            if need > dist:
                errs.append(f"hazard: '{p.text}' -> '{op.text}' dist {dist} need {need}")
            dist += slots[i]
            if p.kind == "mfma": nm += 1
    return errs
```

```python
import sys, math, struct
from fw import *
from asmlib import header, footer, NAME

def f2u(x): return struct.unpack("<I", struct.pack("<f", x))[0]

class Cfg:
    kpol = ""; vpol = ""; qpol = ""; opol = ""; pfpol = ""
    stamps = False; dbg = False; lstamps = None; lt = 3; spin_at = -1; spin_us = 0
    budget = 22
    rt = 0
    thresh = 65536.0
    refhdr = False
    pf = 0
    cpf = 1
    sm_ranges = [(19, 40), (40, 64), (64, 87)]

KW = 16896; KB = 0
VB = 4 * KW; VW = 16384
PB = VB + 4 * VW
SC0 = PB + 24576
SC1 = SC0 + 3072
LDS_TOTAL = SC1 + 3072
FLAG = 1024
assert LDS_TOTAL == 163840
def q_quarter_base(r, q):
    if r == 0: return PB + q * 4224
    return VB + q * VW + VW - (3 - r) * 4224
OST = 144

def vO(dt, r): return (dt * 3 + r) * 16
def vS(r): return 96 + 16 * r
def vPk(r, s): return 144 + (r * 2 + s) * 4
def vFV(b, dt): return 168 + 20 * b + 4 * dt
def vFP(b, r): return 168 + 20 * b + 8 + 4 * r
T0 = 208
vPf, vPfd = 230, 231
vKrd, vVrd0, vVrd1, vPrd, vPwr, vKdma, vVdma = 232, 233, 234, 235, 236, 237, 238
vMc = [239, 240, 241]; vL = [242, 243, 244]; vTs = [245, 246, 247]
vSx, vSr, vFlagA, vFlag, vOut, vLane, vA, vB = 248, 249, 250, 251, 252, 253, 254, 255
def aQ(r, s): return (r * 16 + s) * 4
def aK(s): return 192 + 4 * s
sQ, sK, sV, sO = 12, 16, 20, 24
sW, sG, sU, sT, sC, sTh = 28, 29, 30, 31, 32, 33
sKm0 = [36, 37, 38, 39]; sVm0 = [40, 41, 42, 43]
def sKo(q, n): return 44 + q * 4 + n
def sVo(p): return 60 + p
sX, sY, sZ = 76, 77, 78
sPF = 80
sWS = 84
sSt = 88

def v4(b, n=4): return f"v[{b}:{b+n-1}]"
def a4(b, n=4): return f"a[{b}:{b+n-1}]"
def s4(b): return f"s[{b}:{b+3}]"
def sq(t): return " ".join(t.split())
def mfma(d, a, b, c): return f"v_mfma_f32_32x32x16_bf16 {d}, {a}, {b}, {c}"

def k_read(s, toff):
    q, sp = divmod(s, 4)
    return Op(f"ds_read_b128 {a4(aK(s))}, v{vKrd} offset:{q*4224 + sp*32}", tag=("Kr", toff, s),
              needs=[("K", toff, q, n) for n in range(4)])
def k_dma(cfg, q, n, toff, needs=()):
    return Op(sq(f"buffer_load_dwordx4 v{vKdma}, {s4(sK)}, s{sKo(q,n)} offen offset:{n*1056} {cfg.kpol} lds"), tag=("K", toff, q, n), needs=needs)
def v_dma(cfg, p, toff, needs=()):
    return Op(sq(f"buffer_load_dwordx4 v{vVdma}, {s4(sV)}, s{sVo(p)} offen offset:{(p%4)*1024} {cfg.vpol} lds"), tag=("V", toff, p), needs=needs)
def v_read(dst, kap, dt, half, toff):
    p = 2 * kap + half
    return Op(f"ds_read_b64_tr_b16 {dst}, v{vVrd0 + dt} offset:{p*1024}", tag=("Vr", toff, kap, dt, half), needs=[("V", toff, p)])
def p_read(dst, kap, r, toff):
    return Op(f"ds_read_b128 {dst}, v{vPrd} offset:{(kap*3 + r)*1024}", tag=("Pr", toff, kap, r))
def p_write(r, s, toff):
    return Op(f"ds_write_b128 v{vPwr}, {v4(vPk(r,s))} offset:{(s*3 + r)*1024}", tag=("Pw", toff, r, s))
def pf_op(cfg):
    return [Op(sq(f"buffer_load_dword v{vPfd}, v{vPf}, {s4(sPF)}, 0 offen {cfg.pfpol}")), Op(f"v_add_u32 v{vPf}, 0x10000, v{vPf}")]

def softmax_stream(r, tbase):
    ops = []
    def T(e): return tbase + (e % 8)
    fma = lambda e: Op(f"v_fma_f32 v{T(e)}, v{vS(r)+e}, s{sC}, -v{vMc[r]}")
    ex = lambda e: Op(f"v_exp_f32 v{T(e)}, v{T(e)}")
    def add(e):
        if e == 0: return None
        if e == 1: return Op(f"v_add_f32 v{vTs[r]}, v{T(0)}, v{T(1)}")
        return Op(f"v_add_f32 v{vTs[r]}, v{vTs[r]}, v{T(e)}")
    cvt = lambda e: Op(f"v_cvt_pk_bf16_f32 v{vPk(r, e//8) + (e%8)//2}, v{T(e-1)}, v{T(e)}")
    for i in range(-2, 17):
        if 0 <= i + 2 < 16: ops.append(fma(i + 2))
        if 0 <= i + 1 < 16: ops.append(ex(i + 1))
        if 0 <= i - 1 < 16:
            e = i - 1
            a = add(e)
            if a: ops.append(a)
            if e % 2 == 1: ops.append(cvt(e))
    return ops

M = [T0 + 16, T0 + 17, T0 + 18]
def max_local(r, first):
    o = []; b = vS(r); m = M[r]; m2 = T0 + 19
    o.append(Op(f"v_max3_f32 v{m}, v{b}, v{b+1}, v{b+2}"))
    o.append(Op(f"v_max3_f32 v{m2}, v{b+3}, v{b+4}, v{b+5}"))
    o.append(Op(f"v_max3_f32 v{m}, v{m}, v{b+6}, v{b+7}"))
    o.append(Op(f"v_max3_f32 v{m2}, v{m2}, v{b+8}, v{b+9}"))
    o.append(Op(f"v_max3_f32 v{m}, v{m}, v{b+10}, v{b+11}"))
    o.append(Op(f"v_max3_f32 v{m2}, v{m2}, v{b+12}, v{b+13}"))
    o.append(Op(f"v_max3_f32 v{m}, v{m}, v{b+14}, v{b+15}"))
    o.append(Op(f"v_max_f32 v{m}, v{m}, v{m2}"))
    o.append(Op(f"v_mul_f32 v{m}, s{sC}, v{m}"))
    if not first: o.append(Op(f"v_max_f32 v{m}, v{m}, v{vMc[r]}"))
    o.append(Op(f"ds_write_b32 v{vSx}, v{m} offset:{r*1024}", tag=("Mw", 0, r), cost=8))
    return o
def max_gather_reads(r, base):
    return [Op(f"ds_read_b128 {v4(base)}, v{vSr} offset:{r*1024}", tag=("Mr", 0, r, 0)),
            Op(f"ds_read_b128 {v4(base + 4)}, v{vSr} offset:{r*1024 + 16}", tag=("Mr", 0, r, 1))]
def max_gather_reduce(r, b, dst, tagged=True):
    n = [("Mr", 0, r, 0), ("Mr", 0, r, 1)] if tagged else []
    return [Op(f"v_max3_f32 v{b}, v{b}, v{b+1}, v{b+2}", needs=n), Op(f"v_max3_f32 v{b+3}, v{b+3}, v{b+4}, v{b+5}"),
            Op(f"v_max3_f32 v{b}, v{b}, v{b+6}, v{b+7}"), Op(f"v_max_f32 v{dst}, v{b}, v{b+3}")]

def stamp(cfg, i):
    if not cfg.stamps: return []
    o = [Op(f"{'s_memrealtime' if cfg.rt else 's_memtime'} s[{sSt + 2*i}:{sSt + 2*i + 1}]")]
    if cfg.spin_at == i:
        o += [Op("s_waitcnt lgkmcnt(0)", "salu"), Op(f"L_spin{i}:"), Op("s_sleep 2"), Op("s_memrealtime s[86:87]"), Op("s_waitcnt lgkmcnt(0)", "salu"),
              Op("s_sub_u32 s86, s86, s34"), Op(f"s_cmp_lt_u32 s86, {cfg.spin_us*100}"), Op(f"s_cbranch_scc1 L_spin{i}")]
    return o

def gapcost(g):
    c = 0
    for i, o in enumerate(g):
        if o.kind == "pseudo": c += 0 if i == 0 else 4
        elif i == 0 and o.kind in ("salu", "wait"): c += 0
        else: c += o.cost
    return c

def spread(G, st, lo, hi, budget):
    tot = sum(o.cost for o in st)
    free = [max(0, budget - gapcost(G[g])) for g in range(lo, hi)]
    ftot = sum(free)
    if ftot < tot: print(f"warning: range {lo}-{hi} free {ftot} < {tot}", file=sys.stderr)
    acc = 0.0; done = 0.0; k = 0
    for g in range(lo, hi):
        acc += tot * free[g - lo] / ftot
        while k < len(st) and done + st[k].cost / 2 <= acc:
            G[g].append(st[k]); done += st[k].cost; k += 1
    while k < len(st):
        G[hi - 1].append(st[k]); k += 1

def build(cfg):
    P = []; A = lambda t, **k: P.append(Op(t, **k))
    A("s_cmp_ge_u32 s2, 256"); A("s_cbranch_scc1 L_end")
    if cfg.stamps:
        A("s_memrealtime s[34:35]")
        P += stamp(cfg, 0)
        A(f"s_load_dwordx2 s[{sWS}:{sWS+1}], s[0:1], {32 if cfg.dbg else 40}")
    A("s_load_dwordx8 s[4:11], s[0:1], 0")
    A(f"v_and_b32 v{vLane}, 63, v0")
    A(f"v_lshrrev_b32 v{vA}, 6, v0")
    A(f"s_and_b32 s{sG}, s2, 7")
    A(f"v_readfirstlane_b32 s{sW}, v{vA}")
    t0, t1, t2, t3 = T0, T0 + 1, T0 + 2, T0 + 3
    if cfg.cpf:
        A(f"s_getpc_b64 s[{sX}:{sX+1}]")
        A("L_pc:")
        A(f"v_lshlrev_b32 v{t0}, 7, v0")
        A(f"v_min_u32 v{t0}, L_code_end - L_pc - 4, v{t0}")
        A(f"v_mov_b32 v{t1}, s{sX+1}")
        A(f"v_add_co_u32 v{t0}, vcc, s{sX}, v{t0}")
        A("s_nop 1")
        A(f"v_addc_co_u32 v{t1}, vcc, 0, v{t1}, vcc")
        A(f"global_load_dword v{vPfd}, v[{t0}:{t1}], off")
    A(f"s_lshl_b32 s{sG}, s{sG}, 3"); A(f"s_lshr_b32 s{sX}, s2, 5"); A(f"s_add_u32 s{sG}, s{sG}, s{sX}")
    A(f"s_lshr_b32 s{sT}, s2, 3"); A(f"s_and_b32 s{sT}, s{sT}, 3"); A(f"s_lshl_b32 s{sX}, s{sG}, 2"); A(f"s_add_u32 s{sU}, s{sT}, s{sX}")
    A(f"v_lshrrev_b32 v{t0}, 3, v{vLane}")
    A(f"v_lshlrev_b32 v{t0}, 9, v{t0}")
    A(f"v_bfe_u32 v{t1}, v{vLane}, 4, 1")
    A(f"v_and_b32 v{t2}, 7, v{vLane}")
    A(f"v_xor_b32 v{t3}, v{t2}, v{t1}")
    A(f"v_lshl_add_u32 v{vKdma}, v{t3}, 4, v{t0}")
    A(f"v_lshl_add_u32 v{vOut}, v{t2}, 4, v{t0}")
    A(f"v_lshlrev_b32 v{t1}, 2, v{t1}")
    A(f"v_xor_b32 v{t3}, v{t2}, v{t1}")
    A(f"v_lshl_add_u32 v{vVdma}, v{t3}, 4, v{t0}")
    A(f"s_mul_i32 s{sY}, s{sU}, 49152")
    A(f"s_lshl_b32 s{sX}, s{sW}, 7")
    A(f"s_add_u32 s{sY}, s{sY}, s{sX}")
    A(f"v_add_u32 v{vB}, s{sY}, v{vKdma}")
    A(f"v_add_u32 v{vOut}, s{sY}, v{vOut}")
    A(f"s_lshl_b32 s{sZ}, s{sG}, 19")
    A(f"s_add_u32 s{sX}, s{sX}, s{sZ}")
    A(f"v_add_u32 v{vVdma}, s{sX}, v{vVdma}")
    A(f"s_lshl_b32 s{sX}, s{sW}, 14")
    for b in range(4): A(f"s_add_u32 s{sVm0[b]}, s{sX}, {VB + b*4096}")
    A(f"s_add_u32 s{sX}, s{sX}, s{sZ}")
    A(f"v_add_u32 v{vKdma}, s{sX}, v{vKdma}")
    for q in range(4):
        for n in range(4):
            A(f"s_mov_b32 s{sKo(q,n)}, {n*3040 + q*128}")
    A(f"s_mul_i32 s{sX}, s{sW}, {KW}")
    for q in range(4): A(f"s_add_u32 s{sKm0[q]}, s{sX}, {KB + q*4224}")
    A(f"s_mul_i32 s{sX}, s{sW}, 4224")
    A(f"s_add_u32 m0, s{sX}, {PB}")
    A(f"s_mov_b32 s{sQ+2}, 12582912"); A(f"s_mov_b32 s{sQ+3}, 0x20000")
    A(f"s_add_u32 s{sK+2}, s{sZ}, 524288"); A(f"s_mov_b32 s{sK+3}, 0x20000")
    P.append(W(lgkm=0))
    A(f"s_mov_b32 s{sQ}, s4"); A(f"s_mov_b32 s{sQ+1}, s5")
    A(f"s_mov_b32 s{sK}, s6"); A(f"s_mov_b32 s{sK+1}, s7")
    def q_dma(r):
        return [Op(sq(f"buffer_load_dwordx4 v{vB}, {s4(sQ)}, s{sKo(0,n)} offen offset:{n*1056} {cfg.qpol} lds"), tag=("Q", 0, r, n)) for n in range(4)]
    P += q_dma(0)
    for q in range(4):
        A(f"s_mov_b32 m0, s{sKm0[q]}")
        A("s_nop 0")
        for n in range(4): P.append(k_dma(cfg, q, n, 1))
    for r in (1, 2):
        A(f"s_add_u32 m0, s{sVm0[0]}, {VW - (3 - r) * 4224}")
        A(f"v_add_u32 v{vB}, 0x4000, v{vB}")
        P += q_dma(r)
    A(f"v_add_u32 v{vKdma}, 0x10000, v{vKdma}")
    A(f"s_mov_b32 s{sV}, s8"); A(f"s_mov_b32 s{sV+1}, s9"); A(f"s_mov_b32 s{sV+2}, s{sK+2}"); A(f"s_mov_b32 s{sV+3}, 0x20000")
    for p in range(16): A(f"s_mov_b32 s{sVo(p)}, {(p//4)*16384 + (p%4)*3072}")
    if cfg.pf:
        A(f"s_cmp_ge_u32 s{sW}, 2")
        A(f"s_cselect_b32 s{sPF}, s8, s6"); A(f"s_cselect_b32 s{sPF+1}, s9, s7")
        A(f"s_cselect_b32 s{sX}, 0, 0x10000")
        A(f"s_mov_b32 s{sPF+2}, s{sK+2}"); A(f"s_mov_b32 s{sPF+3}, 0x20000")
        A(f"s_add_u32 s{sX}, s{sX}, s{sZ}")
        A(f"s_lshl_b32 s{sT}, s{sT}, 14"); A(f"s_add_u32 s{sX}, s{sX}, s{sT}")
        A(f"s_and_b32 s{sT}, s{sW}, 1"); A(f"s_lshl_b32 s{sT}, s{sT}, 13"); A(f"s_add_u32 s{sX}, s{sX}, s{sT}")
        A(f"v_lshlrev_b32 v{vPf}, 7, v{vLane}")
        A(f"v_add_u32 v{vPf}, s{sX}, v{vPf}")
        P += pf_op(cfg)
    for p in range(7):
        if p % 4 == 0: A(f"s_mov_b32 m0, s{sVm0[p//4]}"); A("s_nop 0")
        P.append(v_dma(cfg, p, 1))
    if cfg.pf:
        for _ in range(cfg.pf): P += pf_op(cfg)
    A(f"s_mov_b32 s{sO}, s10"); A(f"s_mov_b32 s{sO+1}, s11"); A(f"s_mov_b32 s{sO+2}, 12582912"); A(f"s_mov_b32 s{sO+3}, 0x20000")
    A(f"s_mov_b32 s{sC}, {hex(f2u(math.log2(math.e) / 16.0))}")
    A(f"s_mov_b32 s{sTh}, {hex(f2u(cfg.thresh))}")
    A(f"s_mov_b32 s{sT}, 0")
    A(f"v_bfe_u32 v{t0}, v{vLane}, 3, 2")
    A(f"v_mul_u32_u24 v{t0}, 1056, v{t0}")
    A(f"v_and_b32 v{t1}, 7, v{vLane}")
    A(f"v_lshl_add_u32 v{t0}, v{t1}, 7, v{t0}")
    A(f"v_lshrrev_b32 v{t1}, 5, v{vLane}")
    A(f"v_bfe_u32 v{t2}, v{vLane}, 1, 1")
    A(f"v_xor_b32 v{t2}, v{t2}, v{t1}")
    A(f"v_lshl_add_u32 v{t0}, v{t2}, 4, v{t0}")
    A(f"v_add_u32 v{vA}, {VB}, v{t0}")
    A(f"v_add_u32 v{vB}, {PB}, v{t0}")
    A(f"v_add_u32 v{vKrd}, s{sKm0[0]}, v{t0}")
    A(f"v_bfe_u32 v{t0}, v{vLane}, 2, 2")
    A(f"v_lshl_add_u32 v{t0}, v{t1}, 2, v{t0}")
    A(f"v_lshlrev_b32 v{t0}, 7, v{t0}")
    A(f"v_bfe_u32 v{t2}, v{vLane}, 3, 1")
    A(f"v_lshl_add_u32 v{t0}, v{t2}, 6, v{t0}")
    A(f"v_bfe_u32 v{t2}, v{vLane}, 4, 1")
    A(f"v_lshl_add_u32 v{t0}, v{t2}, 5, v{t0}")
    A(f"v_and_b32 v{t2}, 3, v{vLane}")
    A(f"v_lshl_add_u32 v{t0}, v{t2}, 3, v{t0}")
    A(f"v_add_u32 v{vVrd0}, s{sVm0[0]}, v{t0}")
    A(f"v_xor_b32 v{vVrd1}, 64, v{vVrd0}")
    A(f"v_lshlrev_b32 v{t0}, 4, v{vLane}")
    A(f"v_add_u32 v{vPrd}, {PB}, v{t0}")
    A(f"s_mul_i32 s{sX}, s{sW}, 6144")
    A(f"v_add_u32 v{vPwr}, s{sX}, v{vPrd}")
    A(f"v_and_b32 v{t0}, 31, v{vLane}")
    A(f"v_lshlrev_b32 v{t2}, 5, v{t0}")
    A(f"v_add_u32 v{vSr}, {SC0}, v{t2}")
    A(f"s_lshl_b32 s{sX}, s{sW}, 3")
    A(f"v_lshl_add_u32 v{t2}, v{t1}, 2, v{vSr}")
    A(f"v_add_u32 v{vSx}, s{sX}, v{t2}")
    A(f"v_mov_b32 v{vFlagA}, {FLAG}")
    A(f"v_mov_b32 v{vFlag}, 0")
    A(f"ds_write_b32 v{vFlagA}, v{vFlag}")
    for i in range(96): A(f"v_mov_b32 v{i}, 0")
    for r in range(3): A(f"v_mov_b32 v{vL[r]}, 0")
    P.append(W(lgkm=0))
    def q_read(r, s):
        q, sp = divmod(s, 4)
        base = (vB, PB) if r == 0 else (vA, VB)
        return Op(f"ds_read_b128 {a4(aQ(r,s))}, v{base[0]} offset:{q_quarter_base(r, q) - base[1] + sp*32}", tag=("Qr", 0, r, s))
    kd = []
    for q in range(4):
        for n in range(4):
            kd.append(([Op(f"s_mov_b32 m0, s{sKm0[q]}")] if n == 0 else []) + [k_dma(cfg, q, n, 2, needs=[("Kr", 1, 4*q + i) for i in range(4)])])
    gb = vFV(0, 0)
    for r in range(3):
        A("s_barrier", needs=[("Q", 0, r, n) for n in range(4)] + ([("Mw", 0, r - 1)] + [("Qr", 0, r - 1, s) for s in range(16)] if r else []))
        if r == 0: P += stamp(cfg, 1)
        G = [[] for _ in range(16)]
        LA = 4
        rd = lambda s: ([k_read(s, 1)] if r == 0 else []) + [q_read(r, s)]
        if r: P += max_gather_reads(r - 1, gb)
        for s in range(LA): P += rd(s)
        if r: P += max_gather_reduce(r - 1, gb, vMc[r - 1])
        for s in range(LA, 16): G[s - LA] += rd(s)
        if r == 0:
            for i, g in enumerate([5, 8, 11, 14]): G[g - 1] += kd[i][:-1]; G[g] += kd[i][-1:]
        elif r == 1:
            for i, g in enumerate([1, 3, 5, 7, 9, 11, 13, 15]): G[g - 1] += kd[4 + i][:-1]; G[g] += kd[4 + i][-1:]
        else:
            for i, g in enumerate([1, 3, 5, 7]): G[g - 1] += kd[12 + i][:-1]; G[g] += kd[12 + i][-1:]
            G[8].append(Op(f"s_mov_b32 m0, s{sVm0[1]}")); G[9].append(v_dma(cfg, 7, 1))
            G[10].append(Op(f"s_mov_b32 m0, s{sVm0[2]}"))
            for i, g in enumerate([11, 13, 15]): G[g].append(v_dma(cfg, 8 + i, 1))
            G[12].append(Op(f"v_add_u32 v{vKdma}, 0x10000, v{vKdma}"))
        tail = []
        if r:
            st = softmax_stream(r - 1, T0 + 8 * ((r - 1) % 2))
            tail = st[-12:]
            spread(G, st[:-12], 0, 16, 26)
        else:
            tail = [Op("s_nop 7"), Op("s_nop 3")]
        for s in range(16):
            needs = ([("Kr", 1, s)] if r == 0 else []) + [("Qr", 0, r, s)]
            A(mfma(v4(vS(r), 16), a4(aK(s)), a4(aQ(r, s)), "0" if s == 0 else v4(vS(r), 16)), needs=needs)
            P += G[s]
        P += tail
        P += max_local(r, True)
    P += stamp(cfg, 2)
    A("s_barrier", needs=[("Mw", 0, 2)] + [("Qr", 0, 2, s) for s in range(16)])
    P += max_gather_reads(2, gb)
    P.append(v_dma(cfg, 11, 1))
    A(f"s_mov_b32 m0, s{sVm0[3]}")
    P += max_gather_reduce(2, gb, vMc[2])
    st = softmax_stream(2, T0)
    for i in range(4):
        P.append(v_dma(cfg, 12 + i, 1))
        P += st[i * 14:(i + 1) * 14] if i < 3 else st[42:]
    A(f"v_add_u32 v{vVdma}, 0x10000, v{vVdma}")
    P.append(W(vm=("after", ("K", 2, 3, 3))))
    KPRE = 8
    for s in range(KPRE): P.append(k_read(s, 2))
    P.append(W(lgkm=KPRE - 4))
    P += stamp(cfg, 3)

    G = [[] for _ in range(96)]
    MF = []
    for r in range(3):
        for s in range(16):
            MF.append(Op(mfma(v4(vS(r), 16), a4(aK(s)), a4(aQ(r, s)), "0" if s == 0 else v4(vS(r), 16)),
                         needs=[("Kr", 1, s)] if r == 0 else []))
    for kap in range(8):
        b = kap % 2
        for dt in range(2):
            for r in range(3):
                MF.append(Op(mfma(v4(vO(dt, r), 16), v4(vFV(b, dt)), v4(vFP(b, r)), v4(vO(dt, r), 16)),
                             needs=[("Vr", 0, kap, dt, 0), ("Vr", 0, kap, dt, 1), ("Pr", 0, kap, r)]))
    G[95].append(Need([("Kr", 2, s) for s in range(4)] + [("K", 2, 2, n) for n in range(4)]))
    G[3].append(Need([("Kr", 1, s) for s in range(4, 8)] + [("K", 1, 3, n) for n in range(4)]))
    G[7].append(Need([("Kr", 1, s) for s in range(8, 12)]))
    G[11].append(Need([("Kr", 1, s) for s in range(12, 16)]))
    G[41].append(Need([("V", 0, 0), ("V", 0, 1)]))
    for kap in range(8):
        n = [("Vr", 0, kap, d, h) for d in range(2) for h in range(2)] + [("Pr", 0, kap, rr) for rr in range(3)]
        if kap < 7: n += [("V", 0, 2 * kap + 2), ("V", 0, 2 * kap + 3)]
        G[47 + 6 * kap].append(Need(n))
    G[86].append(Need([("K", 2, 0, n) for n in range(4)]))
    G[91].append(Need([("K", 2, 1, n) for n in range(4)]))
    for s in range(KPRE, 16): G[s - KPRE].append(k_read(s, 1))
    pw = [(r, s) for r in range(3) for s in range(2)]
    for (r, s), g in zip(pw, [2, 5, 8, 11, 14, 17]): G[g].append(p_write(r, s, 0))
    for r in range(3): G[[10, 13, 16][r]].append(Op(f"v_add_f32 v{vL[r]}, v{vL[r]}, v{vTs[r]}"))
    kg = [4, 7, 9, 12, 15, 18, 21, 24, 26, 29, 31, 34, 36, 38, 40, 46]
    for i, g in enumerate(kg):
        q, n = divmod(i, 4)
        if n == 0: G[g - 1 if q else g - 3].insert(0 if not G[g - 1 if q else g - 3] or G[g - 1 if q else g - 3][0].kind != "pseudo" else 1, Op(f"s_mov_b32 m0, s{sKm0[q]}"))
        G[g].append(k_dma(cfg, q, n, 2, needs=[("Kr", 1, 4*q + j) for j in range(4)]))
    G[47].append(Op(f"v_add_u32 v{vKdma}, 0x10000, v{vKdma}"))
    G[22].append(Need([("Pw", 0, r, s) for r, s in pw]))
    G[22].append(Op("s_barrier", needs=[("Pw", 0, r, s) for r, s in pw]))
    if cfg.pf:
        o = pf_op(cfg); G[19].append(o[0]); G[20].append(o[1])
    def frag_reads(kap):
        b = kap % 2
        return [v_read(v4(vFV(b, 0), 2), kap, 0, 0, 0), v_read(v4(vFV(b, 0) + 2, 2), kap, 0, 1, 0),
                p_read(v4(vFP(b, 0)), kap, 0, 0), p_read(v4(vFP(b, 1)), kap, 1, 0), p_read(v4(vFP(b, 2)), kap, 2, 0),
                v_read(v4(vFV(b, 1), 2), kap, 1, 0, 0), v_read(v4(vFV(b, 1) + 2, 2), kap, 1, 1, 0)]
    for kap in range(8):
        g0 = 42 + 6 * kap
        for o, gi in zip(frag_reads(kap), [0, 0, 0, 1, 1, 2, 2]): G[g0 + gi].append(o)
    for kap in range(8):
        g0 = 48 + 6 * kap
        if kap % 2 == 0: G[g0 + 2].insert(0, Op(f"s_mov_b32 m0, s{sVm0[kap//2]}"))
        for half in range(2):
            G[g0 + [3, 5][half] - (1 if kap == 7 else 0)].append(v_dma(cfg, 2 * kap + half, 1, needs=[("Vr", 0, kap, d, half) for d in range(2)]))
    G[87].append(Op(f"v_max3_f32 v{vA}, v{vTs[0]}, v{vTs[1]}, v{vTs[2]}"))
    G[88].append(Op(f"v_cmp_nge_f32 vcc, s{sTh}, v{vA}"))
    G[88].append(Op("s_cbranch_vccnz L_notify"))
    G[88].append(Op("L_notified:"))
    G[90].append(Op("s_barrier", needs=[("Pr", 0, 7, r) for r in range(3)]))
    G[90].append(Op(f"ds_read_b32 v{vFlag}, v{vFlagA}", tag=("F", 0)))
    for s, g in zip(range(KPRE), [87, 87, 88, 88, 91, 91, 93, 93]): G[g].insert(1 if G[g] and G[g][0].kind == "pseudo" else 0, k_read(s, 2))
    G[92].insert(0, Op(f"s_add_u32 s{sT}, s{sT}, 1"))
    G[93].insert(0, Op(f"s_cmp_lt_u32 s{sT}, 7"))
    G[94].insert(0, Need([("F", 0)]))
    G[94].append(Op(f"v_cmp_ne_u32 vcc, 0, v{vFlag}", needs=[("F", 0)]))
    G[95].append(Op(f"v_add_u32 v{vVdma}, 0x10000, v{vVdma}"))
    for r in range(3):
        spread(G, softmax_stream(r, T0 + 8 * (r % 2)), cfg.sm_ranges[r][0], cfg.sm_ranges[r][1], cfg.budget)
    cfg.used = [gapcost(g) for g in G]
    Lp = [Op(".p2align 6"), Op("L_loop:")]
    for g in range(96):
        Lp.append(MF[g])
        if cfg.lstamps and g in cfg.lstamps:
            i = cfg.lstamps.index(g)
            Lp.append(Op(f"s_memtime s[{4 + 2*i if i < 4 else 88 + 2*(i-4) + 8}:{5 + 2*i if i < 4 else 89 + 2*(i-4) + 8}]"))
        Lp += G[g]
    if cfg.lstamps:
        Lp.append(Op("s_waitcnt lgkmcnt(0)", "salu"))
        Lp.append(Op(f"s_cmp_lg_u32 s{sT}, {cfg.lt + 1}"))
        Lp.append(Op("s_cbranch_scc1 L_nocopy"))
        for i in range(7):
            src = 4 + 2*i if i < 4 else 88 + 2*(i-4) + 8
            Lp.append(Op(f"v_writelane_b32 v{vPfd - 2}, s{src}, {i}"))
        Lp.append(Op("L_nocopy:"))
        Lp.append(Op(f"s_cmp_lt_u32 s{sT}, 7"))
    Lp.append(Op("s_cbranch_vccnz L_slow"))
    Lp.append(Op("L_slow_ret:"))
    Lp.append(Op("s_cbranch_scc1 L_loop"))

    F = []; A = lambda t, **k: F.append(Op(t, **k))
    F += stamp(cfg, 4)
    def fV(kap, dt): return (dt * 8 + kap) * 4
    def fP(kap, r): return 64 + (r * 8 + kap) * 4
    def fv_reads(dt, kaps):
        return [v_read(a4(fV(kap, dt) + 2 * half, 2), kap, dt, half, 0) for kap in kaps for half in range(2)]
    for r in range(3): A(f"v_add_f32 v{vL[r]}, v{vL[r]}, v{vTs[r]}")
    for r, s in pw: F.append(p_write(r, s, 0))
    for r in range(3): A(f"ds_write_b32 v{vSx}, v{vL[r]} offset:{3072 + r*1024}", tag=("Lw", 0, r))
    F += fv_reads(0, range(0, 3))
    vOw, vOr = vA, vB
    A(f"v_and_b32 v{t0}, 31, v{vLane}"); A(f"v_mul_u32_u24 v{t0}, {OST}, v{t0}")
    A(f"v_lshrrev_b32 v{t1}, 5, v{vLane}"); A(f"v_lshl_add_u32 v{t0}, v{t1}, 3, v{t0}")
    A(f"v_add_u32 v{vOw}, s{sKm0[0]}, v{t0}")
    A(f"v_lshrrev_b32 v{t0}, 3, v{vLane}"); A(f"v_mul_u32_u24 v{t0}, {OST}, v{t0}")
    A(f"v_and_b32 v{t1}, 7, v{vLane}"); A(f"v_lshl_add_u32 v{t0}, v{t1}, 4, v{t0}")
    A(f"v_add_u32 v{vOr}, s{sKm0[0]}, v{t0}")
    for i in range(12): A(f"s_mov_b32 s{sKo(0,0) + i}, {i * 4096}")
    A("s_barrier", needs=[("Pw", 0, r, s) for r, s in pw] + [("Lw", 0, r) for r in range(3)])
    for kap in range(3): F.append(p_read(a4(fP(kap, 0)), kap, 0, 0))
    rest = []
    for kap in range(3, 8):
        rest += fv_reads(0, [kap]) + [p_read(a4(fP(kap, 0)), kap, 0, 0)]
    lb = vFV(0, 0)
    rest += fv_reads(1, range(4))
    for r in range(3):
        rest.append(Op(f"ds_read_b128 {v4(lb + 8*r)}, v{vSr} offset:{3072 + r*1024}", tag=("Lr", 0, r, 0)))
        rest.append(Op(f"ds_read_b128 {v4(lb + 8*r + 4)}, v{vSr} offset:{3072 + r*1024 + 16}", tag=("Lr", 0, r, 1)))
    rest += fv_reads(1, range(4, 8))
    for r in (1, 2):
        rest += [p_read(a4(fP(kap, r)), kap, r, 0) for kap in range(8)]
    lred = []
    for i in range(7):
        for r in range(3):
            b = lb + 8 * r
            if i == 0: lred.append(Op(f"v_add_f32 v{vL[r]}, v{b}, v{b+1}", needs=[("Lr", 0, rr, x) for rr in range(3) for x in range(2)]))
            else: lred.append(Op(f"v_add_f32 v{vL[r]}, v{vL[r]}, v{b+i+1}"))
    for r in range(3): lred.append(Op(f"v_rcp_f32 v{vL[r]}, v{vL[r]}"))
    lred.append(Op("s_nop 0"))
    allK = [("K", 1, q, n) for q in range(4) for n in range(4)] + [("Kr", 1, s) for s in range(KPRE)]
    def out_ops(dt, r, tb):
        o = []
        b = vO(dt, r)
        for g in range(4):
            for i in range(4): o.append(Op(f"v_mul_f32 v{b+4*g+i}, v{b+4*g+i}, v{vL[r]}"))
            if g > 0:
                o.append(Op(f"ds_write_b64 v{vOw}, {v4(tb + 2*(g-1), 2)} offset:{r*32*OST + dt*64 + (g-1)*16}", tag=("Ow", 0, dt, r, g - 1), needs=allK, cost=10))
            for i in range(2): o.append(Op(f"v_cvt_pk_bf16_f32 v{tb+2*g+i}, v{b+4*g+2*i}, v{b+4*g+2*i+1}"))
        o.append(Op(f"ds_write_b64 v{vOw}, {v4(tb + 6, 2)} offset:{r*32*OST + dt*64 + 48}", tag=("Ow", 0, dt, r, 3), needs=allK, cost=10))
        if dt == 1:
            rb = vO(0, r)
            for i in range(4):
                o.append(Op(f"ds_read_b128 {v4(rb + 4*i)}, v{vOr} offset:{(r*32 + 8*i)*OST}", tag=("Or", 0, r, i)))
            for i in range(4):
                o.append(Op(sq(f"buffer_store_dwordx4 {v4(rb + 4*i)}, v{vOut}, {s4(sO)}, s{sKo(0,0) + r*4 + i} offen {cfg.opol}"), needs=[("Or", 0, r, i)]))
        return o
    tiles = [(0, 0), (1, 0), (0, 1), (1, 1), (0, 2), (1, 2)]
    pend = [(12, o) for o in lred]
    g = 0
    for ti, (dt, r) in enumerate(tiles):
        for kap in range(8):
            A(mfma(v4(vO(dt, r), 16), a4(fV(kap, dt)), a4(fP(kap, r)), v4(vO(dt, r), 16)),
              needs=[("Vr", 0, kap, dt, 0), ("Vr", 0, kap, dt, 1), ("Pr", 0, kap, r)])
            room = 22; nr = 0
            while rest and nr < (3 if g < 12 else 2):
                F.append(rest.pop(0)); room -= 4; nr += 1
            while pend and pend[0][0] <= g and room >= pend[0][1].cost:
                o = pend.pop(0)[1]
                room -= o.cost; F.append(o)
                if o.kind == "dsr" and pend and pend[0][1].kind == "vst":
                    pend = [(max(e, g + 4), x) if x.kind == "vst" and j < 4 else (e, x) for j, (e, x) in enumerate(pend)]
            g += 1
        pend += [(g + 3, o) for o in out_ops(dt, r, vS(0) + 8 * ti)]
    early = [o for e, o in pend if e <= g + 2 or o.kind == "vst" and e < g + 3]
    late = [o for e, o in pend if not (e <= g + 2 or o.kind == "vst" and e < g + 3)]
    F += early
    if len(early) < 12: A("s_nop 7"); A("s_nop 3")
    F += late
    if cfg.stamps:
        F += stamp(cfg, 5)
        F.append(W(vm=0))
        F += stamp(cfg, 6)
        A("s_memrealtime s[6:7]")
        F.append(W(lgkm=0))
        A(f"s_mov_b32 s{sWS+2}, {256 if cfg.dbg else 0x1000000}"); A(f"s_mov_b32 s{sWS+3}, 0x20000")
        A("v_mov_b32 v0, s34"); A("v_mov_b32 v1, s6")
        if cfg.lstamps:
            for i in range(7): A(f"v_readlane_b32 s{sSt + 2*i}, v{vPfd - 2}, {i}")
            A("s_nop 3")
        for i in range(1, 7):
            A(f"s_sub_u32 s{sX}, s{sSt+2*i}, s{sSt}")
            A(f"v_mov_b32 v{1+i}, s{sX}")
        if cfg.dbg:
            A(f"s_mov_b32 s{sX}, 4096"); A("s_cmp_eq_u32 s2, 0"); A(f"s_cselect_b32 s{sX}, 0, s{sX}")
            A("s_cmp_eq_u32 s2, 200"); A(f"s_cselect_b32 s{sX}, 32, s{sX}")
            A(f"s_lshl_b32 s{sY}, s{sW}, 12"); A(f"s_add_u32 s{sX}, s{sX}, s{sY}")
        else:
            A(f"s_lshl_b32 s{sX}, s2, 7"); A(f"s_lshl_b32 s{sY}, s{sW}, 5"); A(f"s_add_u32 s{sX}, s{sX}, s{sY}")
        A(f"v_mov_b32 v8, s{sX}")
        A(f"v_cmp_eq_u32 vcc, 0, v{vLane}")
        A("s_and_saveexec_b64 s[4:5], vcc")
        A(f"buffer_store_dwordx4 v[0:3], v8, {s4(sWS)}, 0 offen")
        A(f"buffer_store_dwordx4 v[4:7], v8, {s4(sWS)}, 0 offen offset:16")
    A("L_end:")
    A("s_endpgm")
    A("L_code_end:")

    N = [Op("L_notify:"), Op(f"v_mov_b32 v{vFlag}, 1"), Op(f"ds_write_b32 v{vFlagA}, v{vFlag}"), W(lgkm=0), Op("s_branch L_notified")]
    S = [Op("L_slow:"), W(lgkm=0), Op("s_nop 7"), Op("s_nop 3")]
    for r in range(3): S += max_local(r, False)
    S += [W(lgkm=0), Op("s_barrier")]
    S.append(Op(f"v_mov_b32 v{vFlag}, 0"))
    S.append(Op(f"ds_write_b32 v{vFlagA}, v{vFlag}"))
    for r in range(3): S += max_gather_reads(r, gb + 8 * r)
    S.append(W(lgkm=0))
    for r in range(3): S += max_gather_reduce(r, gb + 8 * r, M[r], False)
    Fk = [T0 + 19, T0 + 20, T0 + 21]
    for r in range(3): S.append(Op(f"v_sub_f32 v{Fk[r]}, v{vMc[r]}, v{M[r]}"))
    for r in range(3): S.append(Op(f"v_exp_f32 v{Fk[r]}, v{Fk[r]}"))
    for r in range(3): S.append(Op(f"v_mov_b32 v{vMc[r]}, v{M[r]}"))
    for r in range(3): S.append(Op(f"v_mul_f32 v{vL[r]}, v{vL[r]}, v{Fk[r]}"))
    for dt in range(2):
        for r in range(3):
            for i in range(16): S.append(Op(f"v_mul_f32 v{vO(dt,r)+i}, v{vO(dt,r)+i}, v{Fk[r]}"))
    for r in range(3): S += softmax_stream(r, T0 + 8 * (r % 2))
    S.append(Op(f"s_cmp_lt_u32 s{sT}, 7"))
    S.append(Op("s_branch L_slow_ret"))

    trace = [(o, -1) for o in P]
    for t in range(7): trace += [(o, t) for o in Lp]
    trace += [(o, 7) for o in F]
    derive_waits(trace)
    errs = check_hazards(P + Lp + Lp + F) + check_hazards(Lp + S + Lp) + check_hazards(Lp + S + F)
    for e in sorted(set(errs)): print("HAZARD", e, file=sys.stderr)
    assert not errs
    hdr = [l for l in open("standalone__gqa_softmax__near_ridge.s.ref").read().splitlines() if l.startswith(";") and "@launch grid" not in l] if cfg.refhdr else []
    L = header(256, 256, LDS_TOTAL, hdr)
    L += emit(P) + emit(Lp) + emit(F) + emit(N) + emit(S)
    L += footer(512, 256)
    return "\n".join(L) + "\n"

def analyze(w, f):
    import numpy as np
    x = w[:256*4*8].reshape(256, 4, 8).astype(np.int64)
    st = x[:, :, 0]; en = x[:, :, 1]
    t0 = st.min()
    names = ["s1", "s2", "s3", "s4", "s5", "s6"]
    print(f"  span {(en.max()-t0)/100:.2f} us; start spread {(st.max()-t0)/100:.2f}; end min {(en.min()-t0)/100:.2f} med {(np.median(en)-t0)/100:.2f}; clk {np.median(x[:,:,7]/((en-st)/100.0)):.0f} MHz")
    print("  " + "  ".join(f"{n}: {int(np.median(x[:,:,2+i]))} [{x[:,:,2+i].min()}..{x[:,:,2+i].max()}]" for i, n in enumerate(names)))

if __name__ == "__main__":
    cfg = Cfg()
    out = sys.argv[1]
    for a in sys.argv[2:]:
        k, v = a.split("=", 1)
        if not isinstance(getattr(Cfg, k), str): v = eval(v)
        setattr(cfg, k, v)
    open(out, "w").write(build(cfg))
    print("gap costs:", cfg.used, file=sys.stderr)
```

```python
import sys, math, struct
from fw import *
from asmlib import header, footer, NAME

def f2u(x): return struct.unpack("<I", struct.pack("<f", x))[0]

class Cfg:
    kpol = ""; vpol = ""; qpol = ""; opol = ""
    stamps = False; dbg = False; lstamps = None; lt = 3; spin_at = -1; spin_us = 0; rt = 0
    thresh = 65536.0
    refhdr = False
    cpf = 1
    verbose = 0
    mask = 1
    deltas = [[2, 2, 2, 2]]
    burst = 1
    gmask = 0
    oddswap = 0
    ga = 184
    gb = 74
    pwg = [0, 12, 24, 36, 48, 60]
    dma0 = 2
    dmaspan = 46
    rd0 = [3, 4, 4, 31]
    rdspan = [8, 38, 38, 8]
    ovf0 = 11
    fsplit = 3
    fcap = 8
    q1first = 0

KW = 16896; KB = 0
VB = 4 * KW; VW = 16384
PB = VB + 4 * VW
SC0 = PB + 24576
SC1 = SC0 + 2048
LDS_TOTAL = SC1 + 2048
FLAG = 1024
KIMM = [0, 1088, 2112, 3200]
def q_quarter_base(tau, q):
    if tau == 0: return PB + q * 4224
    return VB + q * VW + VW - (3 - tau) * 4224
OST = 144
PL = 4224

def vO(dt, r): return (r * 4 + dt) * 4
def vS(a, r): return 96 + (r * 2 + a) * 4
def vPk(r): return 144 + 4 * r
def vPf(slot, b): return 168 + slot * 8 + 4 * b
vMc = list(range(192, 198)); vL = list(range(198, 204)); vTs = list(range(204, 210))
vKrd, vPrd, vPwr, vKdma, vVdma, vSx, vSr, vFlagA, vFlag, vOut, vLane, vA, vB = range(210, 223)
vVrd = [224, 225, 226, 227]
vDbg = 223
T0 = 228; NT = 12
X0 = 240
def aQ(r, s): return (r * 8 + s) * 4
SETS = [192, 224]
sQ, sK, sV, sO = 12, 16, 20, 24
sW, sG, sU, sT, sC, sTh = 28, 29, 30, 31, 32, 33
sKm0 = [36, 37, 38, 39]; sVm0 = [40, 41, 42, 43]
def sKo(q, n): return 44 + q * 4 + n
def sVo(p): return 60 + p
sX, sY, sZ = 76, 77, 78
sKs, sVs, sKd, sVd, sM = 79, 80, 81, 82, 83
BIAS = 4096
sMq = 33
SEQS = {0: [[0,1,2,3,4,5,6,7]] * 4,
        1: [[0,2,1,3,4,6,5,7],[0,1,2,4,3,5,6,7],[1,0,3,2,4,5,7,6],[1,0,2,3,5,4,6,7]],
        2: [[0,1,3,2,4,5,7,6],[0,1,2,4,3,5,6,7],[0,2,1,3,5,4,6,7],[0,2,1,3,4,6,5,7]],
        3: [[0,1,2,3,4,5,6,7],[0,1,2,3,4,5,6,7],[1,0,3,2,5,4,7,6],[1,0,3,2,5,4,7,6]]}
def adv(which):
    t, d = (sKs, sKd) if which == 'k' else (sVs, sVd)
    return [Op(f"s_bfe_i32 s{d}, s{t}, 0x40000"), Op(f"s_lshl_b32 s{d}, s{d}, 16"), Op(f"s_lshr_b32 s{t}, s{t}, 4")]
def adv_v(which):
    v, d = (vKdma, sKd) if which == 'k' else (vVdma, sVd)
    return Op(f"v_add_u32 v{v}, s{d}, v{v}")
sWS = 84; sSt = 88

def v4(b, n=4): return f"v[{b}:{b+n-1}]"
def a4(b, n=4): return f"a[{b}:{b+n-1}]"
def s4(b): return f"s[{b}:{b+3}]"
def sq(t): return " ".join(t.split())
def mfma(d, a, b, c): return f"v_mfma_f32_16x16x32_bf16 {d}, {a}, {b}, {c}"

def k_read(a, s, toff):
    q, sp = divmod(s, 2)
    return Op(f"ds_read_b128 {a4(SETS[a] + 4*s)}, v{vKrd} offset:{q*4224 + a*2112 + sp*64}", tag=("Kr", toff, a, s),
              needs=[("K", toff, q, 2*a), ("K", toff, q, 2*a + 1)])
def k_dma(cfg, q, n, toff, needs=()):
    return Op(sq(f"buffer_load_dwordx4 v{vKdma}, {s4(sK)}, s{sKo(q,n)} offen offset:{KIMM[n]} {cfg.kpol} lds"), tag=("K", toff, q, n), needs=needs)
def v_dma(cfg, p, toff, needs=()):
    return Op(sq(f"buffer_load_dwordx4 v{vVdma}, {s4(sV)}, s{sVo(p)} offen offset:{(p%4)*1024} {cfg.vpol} lds"), tag=("V", toff, p), needs=needs)
def v_read(dstbase, beta, dt, half, toff):
    p = 4 * beta + 2 * half
    return Op(f"ds_read_b64_tr_b16 {a4(dstbase + 2*half, 2)}, v{vVrd[dt]} offset:{p*1024}", tag=("Vr", toff, beta, dt, half),
              needs=[("V", toff, p), ("V", toff, p + 1)])
def p_read(dst, beta, r, toff):
    return Op(f"ds_read_b128 {dst}, v{vPrd} offset:{(beta*6 + r)*1024}", tag=("Pr", toff, beta, r))
def p_write(r, toff):
    return Op(f"ds_write_b128 v{vPwr}, {v4(vPk(r))} offset:{r*1024}", tag=("Pw", toff, r))

class Task:
    def __init__(self, op, deps=(), earliest=0, prio=0):
        self.op = op; self.deps = list(deps); self.earliest = earliest; self.prio = prio; self.gap = None

def softmax_tasks(quads, earliest, first_quad_of):
    tasks = []; fm = []; ex = []; user = []
    last_add = {}
    e = 0
    for qi, (a, r) in enumerate(quads):
        for i in range(4):
            t = T0 + e % NT
            deps = user[e - NT] if e >= NT else []
            f = Task(Op(f"v_fma_f32 v{t}, v{vS(a,r)+i}, s{sC}, -v{vMc[r]}"), deps, earliest[qi], e * 4)
            x = Task(Op(f"v_exp_f32 v{t}, v{t}"), [f], 0, e * 4 + 5)
            fm.append(f); ex.append(x); user.append([])
            tasks += [f, x]
            first = first_quad_of[r] == qi
            if first and i == 0: pass
            else:
                if first and i == 1:
                    ad = Task(Op(f"v_add_f32 v{vTs[r]}, v{T0 + (e-1) % NT}, v{t}"), [ex[e - 1], x], 0, e * 4 + 10)
                    user[e - 1].append(ad)
                    ad.first_ts = r
                else:
                    ad = Task(Op(f"v_add_f32 v{vTs[r]}, v{vTs[r]}, v{t}"), [x, last_add[r]], 0, e * 4 + 10)
                last_add[r] = ad; user[e].append(ad); tasks.append(ad)
            if i % 2 == 1:
                c = Task(Op(f"v_cvt_pk_bf16_f32 v{vPk(r) + 2*a + i//2}, v{T0 + (e-1) % NT}, v{t}"), [ex[e - 1], x], 0, e * 4 + 11)
                c.pk = (r, 2 * a + i // 2)
                user[e - 1].append(c); user[e].append(c); tasks.append(c)
            e += 1
    return tasks, last_add

def linear(tasks):
    return [t.op for t in sorted(tasks, key=lambda t: t.prio)]

class Gaps:
    def __init__(self, n, cap=8):
        self.n = n; self.cap = cap
        self.first = [None] * n; self.mem = [[] for _ in range(n)]; self.val = [[] for _ in range(n)]; self.tail = [[] for _ in range(n)]
    def cost(self, g): return sum(o.cost for o in self.mem[g] + self.val[g] + self.tail[g])
    def put_first(self, g, op, lo=None):
        lo = g if lo is None else lo
        for x in range(g, lo - 1, -1):
            if self.first[x] is None:
                self.first[x] = op; return x
            if op.kind == "pseudo" and self.first[x].kind == "pseudo":
                self.first[x].needs += op.needs; return x
        raise ValueError(f"no free first slot near {g} for {op.text}")
    def put_mem(self, g, op): self.mem[g].append(op)
    def schedule(self, tasks, deadline, ovf0=0):
        todo = sorted(tasks, key=lambda t: t.prio)
        for g in range(self.n):
            room = self.cap - self.cost(g)
            if g < ovf0: pass
            elif g < deadline:
                rem = sum(t.op.cost for t in todo)
                capleft = sum(max(0, self.cap - self.cost(x)) for x in range(g, deadline))
                if rem > capleft - 12: room += 4
                if rem > capleft + 2 * (deadline - g): room += 4
            else: room = 1000
            while True:
                ready = [t for t in todo if t.earliest <= g and all(d.gap is not None and (d.gap < g or g >= deadline) for d in t.deps) and t.op.cost <= room]
                if not ready: break
                big = [t for t in ready if t.op.cost == 8]
                t = big[0] if big and big[0].prio <= ready[0].prio + 40 else ready[0]
                t.gap = g; self.val[g].append(t.op); room -= t.op.cost; todo.remove(t)
        assert not todo, [t.op.text for t in todo]
    def ops(self, g):
        return ([self.first[g]] if self.first[g] else []) + self.mem[g] + self.val[g] + self.tail[g]

def red_pair(x0, x1, t, op):
    return [[Op(f"v_permlane32_swap_b32 v{x0}, v{x1}")], [Op(f"{op} v{x0}, v{x0}, v{x1}")], [Op(f"v_mov_b32 v{t}, v{x0}")],
            [Op(f"v_permlane16_swap_b32 v{x0}, v{t}")], [Op(f"{op} v{x0}, v{x0}, v{t}")]]

def max_local(tau, first, base):
    o = []
    m = [base, base + 1]
    for i in range(4):
        for k in range(2):
            r = 2 * tau + k; b = vS(0, r)
            if i == 0: o.append(Op(f"v_max3_f32 v{m[k]}, v{b}, v{b+1}, v{b+2}"))
            elif i < 3: o.append(Op(f"v_max3_f32 v{m[k]}, v{m[k]}, v{b+2*i+1}, v{b+2*i+2}"))
            else: o.append(Op(f"v_max_f32 v{m[k]}, v{m[k]}, v{b+7}"))
    st = red_pair(m[0], m[1], base + 2, "v_max_f32")
    o += [Op("s_nop 1")] + st[0] + st[1] + st[2] + [Op("s_nop 1")] + st[3] + st[4]
    o.append(Op(f"v_mul_f32 v{m[0]}, s{sC}, v{m[0]}"))
    o.append(Op(f"ds_write_b32 v{vSx}, v{m[0]} offset:{tau*512}", tag=("Mw", 0, tau), cost=8))
    return o
def gather_reads(r, dst, off, tag):
    return Op(f"ds_read_b128 {v4(dst)}, v{vSr} offset:{off + r*256}", tag=(tag, 0, r))

def stamp(cfg, i):
    if not cfg.stamps: return []
    o = [Op(f"{'s_memrealtime' if cfg.rt else 's_memtime'} s[{sSt + 2*i}:{sSt + 2*i + 1}]")]
    if cfg.spin_at == i:
        o += [Op("s_waitcnt lgkmcnt(0)", "salu"), Op(f"L_spin{i}_{id(o)}:"), Op("s_sleep 2"), Op("s_memrealtime s[86:87]"), Op("s_waitcnt lgkmcnt(0)", "salu"),
              Op("s_sub_u32 s86, s86, s34"), Op(f"s_cmp_lt_u32 s86, {cfg.spin_us*100}"), Op(f"s_cbranch_scc1 L_spin{i}_{id(o)}")]
    return o

def fV(beta, dt): return (dt * 4 + beta) * 4
def fP(beta, r): return 64 + (r * 4 + beta) * 4
vPlw, vPlr = vA, vB
def pl_write(r): return Op(f"ds_write_b128 v{vPlw}, {v4(vPk(r))} offset:{r*1024}", tag=("Plw", 0, r))
def pl_read(beta, r, toff): return Op(f"ds_read_b128 {a4(fP(beta, r))}, v{vPlr} offset:{beta*KW + r*1024}", tag=("Plr", toff, beta, r))
def l_publish():
    o = []
    for r in range(6): o.append(Op(f"v_add_f32 v{X0 + r}, v{vL[r]}, v{vTs[r]}"))
    sts = [red_pair(X0 + 2*tau, X0 + 2*tau + 1, X0 + 6 + tau, "v_add_f32") for tau in range(3)]
    for i in range(5):
        for tau in range(3): o += sts[tau][i]
    w = [Op(f"ds_write_b32 v{vSx}, v{X0 + 2*tau} offset:{SC1 - SC0 + tau*512}", tag=("Lw", 0, tau), cost=8) for tau in range(3)]
    return o, w

def second_half(DL, which):
    if which == "k":
        return 0 if 4 + DL[0] > 3 + DL[3] else 3
    return 2 if 2 + DL[2] > 1 + DL[1] else 1

def body(cfg, DL, sfx):
    G = Gaps(192)
    MF = []
    for a in range(2):
        for r in range(6):
            for s in range(8):
                MF.append(Op(mfma(v4(vS(a, r)), a4(SETS[a] + 4*s), a4(aQ(r, s)), "0" if s == 0 else v4(vS(a, r))),
                             needs=[("Kr", 1, a, s)] if r == 0 else []))
    for hb in range(2):
        for r in range(6):
            k = 6 * hb + r
            for dt in range(4):
                for b in range(2):
                    beta = 2 * hb + b
                    n = [("Pr", 0, beta, r)] if dt == 0 else []
                    if r == 0: n += [("Vr", 0, beta, dt, 0), ("Vr", 0, beta, dt, 1)]
                    MF.append(Op(mfma(v4(vO(dt, r)), a4(SETS[hb] + 4*(2*dt + b)), v4(vPf(k % 3, b)), v4(vO(dt, r))), needs=n))
    GA = cfg.ga; GB = cfg.gb
    pwg = cfg.pwg
    for r in range(6): G.put_mem(pwg[r], p_write(r, 0))
    G.put_mem(GB, Op("s_barrier", needs=[("Pw", 0, r) for r in range(6)]))
    G.put_first(GB, Need([("Pw", 0, r) for r in range(6)]))
    G.put_mem(GA, Op("s_barrier", needs=[("Pr", 0, 2, 5), ("Pr", 0, 3, 5)]))
    G.put_mem(GA + 1, Op(f"ds_read_b32 v{vFlag}, v{vFlagA}", tag=("F", 0)))
    def free_at(g, lim=0):
        while G.cost(g) > lim: g += 1
        return g
    def chunk_dma(c, i, wrap):
        if c in (0, 3):
            a = 1 if c == 0 else 0; toff = (1 if c == 0 else 2) - wrap; q, n = divmod(i, 2)
            rd = [("Kr", toff, a, 2*q), ("Kr", toff, a, 2*q + 1)]
            return (sKm0[q] if n == 0 else None), k_dma(cfg, q, 2*a + n, toff + 1, needs=rd)
        hb = c - 1; p = 8 * hb + i; toff = -wrap
        rd = [("Vr", toff, p // 4, dt, (p % 4) // 2) for dt in range(4)]
        return (sVm0[p // 4] if p % 4 == 0 else None), v_dma(cfg, p, toff + 1, needs=rd)
    lastd = {}
    lead = [c for c in range(4) if DL[c] == 0]
    rd0 = list(cfg.rd0); rdspan = list(cfg.rdspan)
    for c in range(4):
        if DL[c] == 0: rd0[c] = 1; rdspan[c] = 8 if c in (0, 3) else 24
        elif DL[c] == 3: rd0[c] = 31 if c in (0, 3) else 18; rdspan[c] = 8 if c in (0, 3) else 20
    for c in range(4):
        ph = (c + DL[c]) % 4; wrap = (c + DL[c]) // 4
        d0, dsp = cfg.dma0, cfg.dmaspan
        if DL[c] == 0: d0, dsp = 11, 36
        elif lead and cfg.burst and ph == (lead[0] + 1) % 4: d0, dsp = 13, 35
        for i in range(8):
            g = free_at(48 * ph + d0 + (i * dsp) // 8)
            m, o = chunk_dma(c, i, wrap)
            if DL[c] == 0 and i % 2 == 0: G.put_first(g, Need(list(o.needs)))
            if m is not None: G.put_first(g - 1, Op(f"s_mov_b32 m0, s{m}"), g - 3)
            G.put_mem(g, o); lastd[c] = g
    for k in range(12):
        hb, r = divmod(k, 6)
        g = 96 + 8 * (k - 2)
        for b in range(2):
            g = free_at(g); G.put_mem(g, p_read(v4(vPf(k % 3, b)), 2*hb + b, r, 0)); g += 1
        assert g <= 96 + 8 * k - 6, (k, g)
        G.put_first(96 + 8 * k - 1, Need([("Pr", 0, 2*hb + b, r) for b in range(2)]), 96 + 8 * k - 4)
    for c in range(4):
        if c in (0, 3):
            a = 1 if c == 0 else 0; toff = 1 if c == 0 else 2
            rds = [[k_read(a, 2*q, toff), k_read(a, 2*q + 1, toff)] for q in range(4)]
        else:
            hb = c - 1
            rds = [[v_read(SETS[hb] + 4*(2*dt + j // 2), 2*hb + j // 2, dt, j % 2, 0) for dt in range(4)] for j in range(4)]
        for j in range(4):
            g = 48 * c + rd0[c] + (j * rdspan[c]) // 4
            for x, o in enumerate(rds[j]):
                dbl = DL[c] in (0, 3) and c in (1, 2)
                g = free_at(g, 4 if dbl else 0)
                if x == 0: G.put_first(g, Need(list(o.needs)), g - 3)
                G.put_mem(g, o)
                if not dbl: g += 1
                elif G.cost(g) >= 8: g += 2
            assert g <= 48 * c + 44, (c, j, g)
        G.put_first(48 * c + 47, Need([o.tag for rr in rds for o in rr]), 48 * c + 45)
    quads = [(a, r) for a in range(2) for r in range(6)]
    tasks, last_add = softmax_tasks(quads, [8 * i + 11 for i in range(12)], {r: r for r in range(6)})
    ladd = [Task(Op(f"v_add_f32 v{vL[r]}, v{vL[r]}, v{vTs[r]}"), [], 0, -100 + r) for r in range(6)]
    for t in tasks:
        if hasattr(t, "first_ts"): t.deps.append(ladd[t.first_ts])
        if hasattr(t, "pk"): t.earliest = max(t.earliest, pwg[t.pk[0]] + 1)
    tasks += ladd
    c1 = Task(Op(f"v_max3_f32 v{X0+12}, v{vTs[0]}, v{vTs[1]}, v{vTs[2]}"), [last_add[r] for r in range(3)], 0, 150)
    c2 = Task(Op(f"v_max3_f32 v{X0+12}, v{X0+12}, v{vTs[3]}, v{vTs[4]}"), [c1, last_add[3], last_add[4]], 0, 190)
    c3 = Task(Op(f"v_max_f32 v{X0+12}, v{X0+12}, v{vTs[5]}"), [c2, last_add[5]], 0, 1000)
    c4 = Task(Op(f"v_cmp_nge_f32 vcc, s{sTh}, v{X0+12}"), [c3], 0, 1001)
    tasks += [c1, c2, c3, c4]
    for c, v in ((second_half(DL, "k"), vKdma), (second_half(DL, "v"), vVdma)):
        assert lastd[c] < 191
        G.val[lastd[c] + 1].append(Op(f"v_add_u32 v{v}, 0x10000, v{v}"))
    G.schedule(tasks, GA - 3, cfg.ovf0)
    gbr = c4.gap + 2
    while G.first[gbr] is not None: gbr += 1
    assert gbr <= GA, (c4.gap, gbr)
    G.first[gbr] = Op(f"s_cbranch_vccnz L_notify{sfx}")
    G.mem[gbr].insert(0, Op(f"L_notified{sfx}:"))
    G.put_first(149, Op(f"s_add_u32 s{sT}, s{sT}, 1"), 146)
    G.put_first(156, Op(f"s_cmp_lt_u32 s{sT}, 7"), 152)
    G.put_first(189, Need([("F", 0)]))
    G.val[189].append(Op(f"v_cmp_ne_u32 vcc, 0, v{vFlag}", needs=[("F", 0)]))
    costs = [G.cost(g) for g in range(192)]
    if cfg.verbose: print("loop est cycles", sum(max(16, 8 + c) for c in costs), costs, file=sys.stderr)
    L = []
    for g in range(192):
        L.append(MF[g])
        if cfg.lstamps and g in cfg.lstamps:
            i = cfg.lstamps.index(g)
            L.append(Op(f"s_memtime s[{4 + 2*i if i < 4 else 88 + 2*(i-4) + 8}:{5 + 2*i if i < 4 else 89 + 2*(i-4) + 8}]"))
        L += G.ops(g)
    return L

def build(cfg):
    P = []; A = lambda t, **k: P.append(Op(t, **k))
    sQo = [79, 80, 81, 82]
    vQd = X0 + 15
    A("s_cmp_ge_u32 s2, 256"); A("s_cbranch_scc1 L_end")
    if cfg.stamps:
        A("s_memrealtime s[34:35]")
        P += stamp(cfg, 0)
        A(f"s_load_dwordx2 s[{sWS}:{sWS+1}], s[0:1], {32 if cfg.dbg else 40}")
    A("s_load_dwordx8 s[4:11], s[0:1], 0")
    A(f"v_and_b32 v{vLane}, 63, v0")
    A(f"v_lshrrev_b32 v{vA}, 6, v0")
    A(f"s_and_b32 s{sG}, s2, 7")
    A(f"v_readfirstlane_b32 s{sW}, v{vA}")
    t0, t1, t2, t3 = T0, T0 + 1, T0 + 2, T0 + 3
    A(f"s_lshl_b32 s{sG}, s{sG}, 3"); A(f"s_lshr_b32 s{sX}, s2, 5"); A(f"s_add_u32 s{sG}, s{sG}, s{sX}")
    A(f"s_bfe_u32 s{sT}, s2, 0x20003"); A(f"s_mov_b32 s3, s{sT}"); A(f"s_lshl_b32 s{sX}, s{sG}, 2"); A(f"s_add_u32 s{sU}, s{sT}, s{sX}")
    A(f"v_lshrrev_b32 v{t0}, 3, v{vLane}")
    A(f"v_lshlrev_b32 v{t0}, 9, v{t0}")
    A(f"v_lshrrev_b32 v{t1}, 4, v{vLane}")
    A(f"v_and_b32 v{t2}, 7, v{vLane}")
    A(f"v_xor_b32 v{t3}, v{t2}, v{t1}")
    A(f"v_lshl_add_u32 v{vKdma}, v{t3}, 4, v{t0}")
    A(f"s_mul_i32 s{sY}, s{sU}, 49152")
    A(f"s_lshl_b32 s{sX}, s{sW}, 7")
    if cfg.gmask & 2: A(f"s_bfe_u32 s{sMq}, s{sG}, 0x20004"); A(f"s_lshl_b32 s{sMq}, s{sMq}, 7")
    else: A(f"s_mov_b32 s{sMq}, 0")
    A(f"s_xor_b32 s{sZ}, s{sX}, s{sMq}")
    A(f"s_add_u32 s{sZ}, s{sY}, s{sZ}")
    A(f"s_add_u32 s{sY}, s{sY}, s{sX}")
    A(f"v_add_u32 v{vQd}, s{sZ}, v{vKdma}")
    for n in range(4): A(f"s_mov_b32 s{sQo[n]}, {n*4096 - KIMM[n]}")
    A(f"s_mul_i32 s{sX}, s{sW}, 4224")
    A(f"s_add_u32 m0, s{sX}, {PB}")
    A(f"s_mov_b32 s{sQ+2}, 12582912"); A(f"s_mov_b32 s{sQ+3}, 0x20000")
    A(f"s_and_b32 s{sM}, s{sT}, {1 if cfg.mask else 0}"); A(f"s_mul_i32 s{sM}, s{sM}, 0xa000")
    if cfg.gmask & 1:
        A(f"s_and_b32 s{sX}, s{sG}, 15"); A(f"s_lshl_b32 s{sX}, s{sX}, 12"); A(f"s_xor_b32 s{sM}, s{sM}, s{sX}")
    A(f"s_lshl_b32 s{sZ}, s{sG}, 19")
    A(f"s_lshl_b32 s{sX}, s{sW}, 14")
    A(f"s_and_b32 s{sT}, s{sM}, 0xc000"); A(f"s_xor_b32 s{sX}, s{sX}, s{sT}")
    A(f"s_add_u32 s{sX}, s{sX}, s{sZ}")
    A(f"v_add_u32 v{vKdma}, s{sX}, v{vKdma}")
    P.append(W(lgkm=0))
    A(f"s_mov_b32 s{sQ}, s4"); A(f"s_mov_b32 s{sQ+1}, s5")
    def q_dma(tau):
        return [Op(sq(f"buffer_load_dwordx4 v{vQd}, {s4(sQ)}, s{sQo[n]} offen offset:{KIMM[n]} {cfg.qpol} lds"), tag=("Q", 0, tau, n)) for n in range(4)]
    P += q_dma(0)
    A(f"s_sub_u32 s{sK}, s6, {BIAS}"); A(f"s_subb_u32 s{sK+1}, s7, 0")
    A(f"s_add_u32 s{sK+2}, s{sZ}, {524288 + BIAS}"); A(f"s_mov_b32 s{sK+3}, 0x20000")
    A(f"s_and_b32 s{sT}, s{sM}, 0x3000"); A(f"s_or_b32 s{sT}, s{sT}, s{sMq}")
    for n in range(4):
        for q in range(4):
            A(f"s_xor_b32 s{sX}, s{sT}, {n*4096 + q*128}")
            A(f"s_add_u32 s{sKo(q,n)}, s{sX}, {BIAS - KIMM[n]}")
    A(f"s_mul_i32 s{sX}, s{sW}, {KW}")
    for q in range(4): A(f"s_add_u32 s{sKm0[q]}, s{sX}, {KB + q*4224}")
    def k_half(a, toff, needs=lambda q: ()):
        return [(sKm0[q] if n == 0 else None, k_dma(cfg, q, 2*a + n, toff, needs=needs(q))) for q in range(4) for n in range(2)]
    def flat(dm):
        o = []
        for m, d in dm:
            if m is not None: o += [Op(m if isinstance(m, str) else f"s_mov_b32 m0, s{m}"), Op("s_nop 0")]
            o.append(d)
        return o
    H = P
    variants = []
    for DL in cfg.deltas:
        key = tuple(DL)
        variants.append(key)
    out = []
    nvar = len(cfg.deltas)
    for mi in range(1, nvar):
        H += [Op(f"s_cmp_eq_u32 s3, {mi}"), Op(f"s_cbranch_scc1 L_m{mi}")]
    for mi, DL in enumerate(cfg.deltas):
        sfx = f"_{mi}"
        P = [Op(".p2align 6"), Op(f"L_m{mi}:")] if mi else []
        A = lambda t, **k: P.append(Op(t, **k))
        a1st = 1 if (cfg.oddswap and mi % 2) else 0
        P += flat(k_half(a1st, 1))
        if cfg.cpf:
            A(f"s_getpc_b64 s[{sX}:{sX+1}]")
            A(f"L_pc{sfx}:")
            A(f"v_lshlrev_b32 v{X0}, 7, v0")
            A(f"v_min_u32 v{X0}, L_code_end{sfx} - L_pc{sfx} - 4, v{X0}")
            A(f"v_mov_b32 v{X0+1}, s{sX+1}")
            A(f"v_add_co_u32 v{X0}, vcc, s{sX}, v{X0}")
            A("s_nop 1")
            A(f"v_addc_co_u32 v{X0+1}, vcc, 0, v{X0+1}, vcc")
            A(f"global_load_dword v{vDbg}, v[{X0}:{X0+1}], off")
            A(f"s_mul_i32 s{sY}, s{sU}, 49152"); A(f"s_lshl_b32 s{sX}, s{sW}, 7"); A(f"s_add_u32 s{sY}, s{sY}, s{sX}")
        A(f"v_lshl_add_u32 v{vOut}, v{t2}, 4, v{t0}")
        A(f"v_add_u32 v{vOut}, s{sY}, v{vOut}")
        A(f"v_lshlrev_b32 v{t1}, 1, v{t1}")
        A(f"v_xor_b32 v{t3}, v{t2}, v{t1}")
        A(f"v_lshl_add_u32 v{vVdma}, v{t3}, 4, v{t0}")
        A(f"s_lshl_b32 s{sX}, s{sW}, 7")
        A(f"s_add_u32 s{sX}, s{sX}, s{sZ}")
        A(f"v_add_u32 v{vVdma}, s{sX}, v{vVdma}")
        A(f"s_lshl_b32 s{sX}, s{sW}, 14")
        for b in range(4): A(f"s_add_u32 s{sVm0[b]}, s{sX}, {VB + b*4096}")
        A(f"s_sub_u32 s{sV}, s8, {BIAS}"); A(f"s_subb_u32 s{sV+1}, s9, 0"); A(f"s_mov_b32 s{sV+2}, s{sK+2}"); A(f"s_mov_b32 s{sV+3}, 0x20000")
        for p in range(16):
            A(f"s_xor_b32 s{sVo(p)}, s{sM}, {p*4096}"); A(f"s_add_u32 s{sVo(p)}, s{sVo(p)}, {BIAS - (p%4)*1024}")
        A(f"s_mov_b32 s{sO}, s10"); A(f"s_mov_b32 s{sO+1}, s11"); A(f"s_mov_b32 s{sO+2}, 12582912"); A(f"s_mov_b32 s{sO+3}, 0x20000")
        A(f"s_mov_b32 s{sC}, {hex(f2u(math.log2(math.e) / 16.0))}")
        A(f"s_mov_b32 s{sTh}, {hex(f2u(cfg.thresh))}")
        A(f"s_mov_b32 s{sT}, 0")
        A(f"v_bfe_u32 v{t0}, v{vLane}, 3, 1")
        A(f"v_mul_u32_u24 v{t0}, 1088, v{t0}")
        A(f"v_and_b32 v{t1}, 7, v{vLane}")
        A(f"v_lshl_add_u32 v{t0}, v{t1}, 7, v{t0}")
        A(f"v_lshrrev_b32 v{t1}, 4, v{vLane}")
        A(f"v_bfe_u32 v{t2}, v{vLane}, 1, 2")
        A(f"v_xor_b32 v{t2}, v{t2}, v{t1}")
        A(f"v_lshl_add_u32 v{t0}, v{t2}, 4, v{t0}")
        A(f"v_add_u32 v{vA}, {VB}, v{t0}")
        A(f"v_add_u32 v{vB}, {PB}, v{t0}")
        A(f"v_add_u32 v{vKrd}, s{sKm0[0]}, v{t0}")
        A(f"v_lshrrev_b32 v{t0}, 2, v{vLane}")
        A(f"v_lshlrev_b32 v{t0}, 7, v{t0}")
        A(f"v_bfe_u32 v{t2}, v{vLane}, 3, 2")
        A(f"v_lshl_add_u32 v{t0}, v{t2}, 5, v{t0}")
        A(f"v_and_b32 v{t2}, 3, v{vLane}")
        A(f"v_lshl_add_u32 v{t0}, v{t2}, 3, v{t0}")
        A(f"v_add_u32 v{vVrd[0]}, s{sVm0[0]}, v{t0}")
        for dt in range(1, 4): A(f"v_xor_b32 v{vVrd[dt]}, {dt*32}, v{vVrd[0]}")
        A(f"v_lshlrev_b32 v{t0}, 4, v{vLane}")
        A(f"v_add_u32 v{vPrd}, {PB}, v{t0}")
        A(f"s_mul_i32 s{sX}, s{sW}, 6144")
        A(f"v_add_u32 v{vPwr}, s{sX}, v{vPrd}")
        A(f"v_and_b32 v{t0}, 15, v{vLane}")
        A(f"v_lshlrev_b32 v{t0}, 4, v{t0}")
        A(f"v_add_u32 v{vSr}, {SC0}, v{t0}")
        A(f"v_lshrrev_b32 v{t2}, 5, v{vLane}")
        A(f"v_lshl_add_u32 v{t2}, v{t2}, 8, v{vSr}")
        A(f"s_lshl_b32 s{sX}, s{sW}, 2")
        A(f"v_add_u32 v{vSx}, s{sX}, v{t2}")
        A(f"v_mov_b32 v{vFlagA}, {FLAG}")
        A(f"v_mov_b32 v{vFlag}, 0")
        A(f"ds_write_b32 v{vFlagA}, v{vFlag}")
        A(f"v_add_u32 v{vQd}, 0x4000, v{vQd}")
        zero = [Op(f"v_mov_b32 v{i}, 0") for i in range(96)] + [Op(f"v_mov_b32 v{vL[r]}, 0") for r in range(6)]
        def qm0(tau): return f"s_add_u32 m0, s{sVm0[0]}, {VW - (3 - tau) * 4224}"
        q1 = [(qm0(1) if n == 0 else None, o) for n, o in enumerate(q_dma(1))]
        pre = (q1 + k_half(1 - a1st, 1)) if cfg.q1first else (k_half(1 - a1st, 1) + q1)
        nz = len(zero) // len(pre) + 1
        for i, x in enumerate(pre):
            P += zero[i * nz:(i + 1) * nz] + flat([x])
        A(f"v_add_u32 v{vQd}, 0x4000, v{vQd}")
        A(f"v_add_u32 v{vKdma}, 0x10000, v{vKdma}")
        P.append(W(lgkm=0))
        def q_read(r, s):
            tau, a = divmod(r, 2); q, sp = divmod(s, 2)
            base = (vB, PB) if tau == 0 else (vA, VB)
            return Op(f"ds_read_b128 {a4(aQ(r,s))}, v{base[0]} offset:{q_quarter_base(tau, q) - base[1] + a*2112 + sp*64}", tag=("Qr", 0, r, s))
        def gather_max(tau):
            rd = [gather_reads(2*tau + k, X0 + 4 + 4*k, 0, "Mr") for k in range(2)]
            red = []
            for i in range(2):
                for k in range(2):
                    b = X0 + 4 + 4 * k; r = 2 * tau + k
                    if i == 0: red.append(Op(f"v_max3_f32 v{b}, v{b}, v{b+1}, v{b+2}", needs=[("Mr", 0, r)]))
                    else: red.append(Op(f"v_max_f32 v{vMc[r]}, v{b}, v{b+3}"))
            return rd, red
        krd = lambda a: (lambda q: [("Kr", 1, a, 2*q), ("Kr", 1, a, 2*q + 1)])
        stream = [(qm0(2) if n == 0 else None, o) for n, o in enumerate(q_dma(2))] + k_half(a1st, 2, krd(a1st)) + k_half(1 - a1st, 2, krd(1 - a1st))
        wrap = [(c + DL[c]) // 4 for c in range(4)]
        vh = lambda hb, toff: [(sVm0[p // 4] if p % 4 == 0 else None, v_dma(cfg, p, toff)) for p in range(8 * hb, 8 * hb + 8)]
        late = []
        if not wrap[1]: stream += vh(0, 1)
        if not wrap[2]: late += vh(1, 1)
        if not wrap[3]: late += k_half(0, 3, lambda q: [("Kr", 2, 0, 2*q), ("Kr", 2, 0, 2*q + 1)])
        for tau in range(3):
            A("s_barrier", needs=[("Q", 0, tau, n) for n in range(4)] + ([("Mw", 0, tau - 1)] + [("Qr", 0, 2*tau - 2 + k, s) for k in range(2) for s in range(8)] if tau else []))
            if tau == 0: P += stamp(cfg, 1)
            G = Gaps(32)
            order = [(2*tau + k, a, s) for a in (a1st, 1 - a1st) for k in range(2) for s in range(8)]
            rds = []
            for u, (r, a, s) in enumerate(order):
                if tau == 0 and r == 0: rds.append((u, k_read(a, s, 1)))
                if a == a1st: rds.append((u, q_read(r, s)))
            LA = 6
            if tau:
                rd, red = gather_max(tau - 1)
                P += rd
            P += [o for u, o in rds if u < LA]
            if tau: P += red
            gs = [1, 5, 9, 13, 18, 22, 26, 30]
            for g in gs:
                if not stream: break
                m, o = stream.pop(0)
                if m is not None: G.put_first(g - 1, Op(m if isinstance(m, str) else f"s_mov_b32 m0, s{m}"))
                G.put_mem(g, o)
            gi = 0
            for u, o in rds:
                if u < LA: continue
                while G.cost(gi) >= 8: gi += 1
                assert gi <= u - LA + 2, (tau, u, gi)
                G.put_mem(gi, o)
            if tau:
                qs = [(a, 2*tau - 2 + k) for k in range(2) for a in range(2)]
                tasks, _ = softmax_tasks(qs, [0] * 4, {2*tau - 2: 0, 2*tau - 1: 2})
                G.cap = 12
                G.schedule(tasks, 31)
            for u, (r, a, s) in enumerate(order):
                needs = ([("Kr", 1, a, s)] if tau == 0 and r == 0 else []) + ([("Qr", 0, r, s)] if a == a1st else [])
                A(mfma(v4(vS(a, r)), a4(SETS[a] + 4*s), a4(aQ(r, s)), "0" if s == 0 else v4(vS(a, r))), needs=needs)
                P += G.ops(u)
            if tau == 2:
                for s in range(8): P.append(k_read(0, s, 2))
            else: P += [Op("s_nop 7")]
            P += max_local(tau, True, X0)
        A(f"v_add_u32 v{vKdma}, 0x10000, v{vKdma}")
        P += stamp(cfg, 2)
        A("s_barrier", needs=[("Mw", 0, 2)] + [("Qr", 0, 4 + k, s) for k in range(2) for s in range(8)])
        rd, red = gather_max(2)
        P += rd
        tasks, _ = softmax_tasks([(a, 4 + k) for k in range(2) for a in range(2)], [0] * 4, {4: 0, 5: 2})
        st = red + linear(tasks)
        stream += late
        n = len(st) // len(stream) + 1
        for i, x in enumerate(stream):
            P += flat([x]) + st[i * n:(i + 1) * n]
        if not wrap[1] and not wrap[2]: A(f"v_add_u32 v{vVdma}, 0x10000, v{vVdma}")
        P.append(W(lgkm=0))
        P += stamp(cfg, 3)

        Lp = [Op(".p2align 6"), Op(f"L_loop{sfx}:")] + body(cfg, DL, sfx)
        if cfg.lstamps:
            Lp.append(Op("s_waitcnt lgkmcnt(0)", "salu"))
            Lp.append(Op(f"s_cmp_lg_u32 s{sT}, {cfg.lt + 1}"))
            Lp.append(Op(f"s_cbranch_scc1 L_nocopy{sfx}"))
            for i in range(7):
                src = 4 + 2*i if i < 4 else 88 + 2*(i-4) + 8
                Lp.append(Op(f"v_writelane_b32 v{vDbg}, s{src}, {i}"))
            Lp.append(Op(f"L_nocopy{sfx}:"))
            Lp.append(Op(f"s_cmp_lt_u32 s{sT}, 7"))
        Lp += [Op(f"s_cbranch_vccnz L_slow{sfx}"), Op(f"L_slow_ret{sfx}:"), Op(f"s_cbranch_scc1 L_loop{sfx}")]

        F = []; A = lambda t, **k: F.append(Op(t, **k))
        F += stamp(cfg, 4)
        vOw, vOr = vA, vB
        hfirst = 1 if second_half(DL, "v") == 1 else 0
        vd = [x for hb in (hfirst, 1 - hfirst) if wrap[1 + hb] for x in vh(hb, 0)]
        while len(vd) > 8: F += flat([vd.pop(0)])
        vr = [v_read(fV(beta, dt), beta, dt, half, 0) for hb in (hfirst, 1 - hfirst) for dt in range(4) for beta in (2*hb, 2*hb + 1) for half in range(2)]
        lo, lw = l_publish()
        for r in range(6):
            if vd and r % 2 == 0: F += flat([vd.pop(0)])
            F.append(p_write(r, 0))
            F += lo[r * 4:(r + 1) * 4] if r < 5 else lo[20:]
        F += lw
        F += vr[:10]; vr = vr[10:]
        A("s_barrier", needs=[("Pw", 0, r) for r in range(6)] + [("Lw", 0, tau) for tau in range(3)])
        fs = cfg.fsplit if vd else 0
        order = [(r, dt, beta) for r in range(fs) for dt in range(4) for beta in (2*hfirst, 2*hfirst + 1)]
        order += [(r, dt, beta) for r in range(fs) for dt in range(4) for beta in (2 - 2*hfirst, 3 - 2*hfirst)]
        order += [(r, dt, beta) for r in range(fs, 6) for dt in range(4) for beta in range(4)]
        NG = 96 + 40
        G = Gaps(NG)
        firstuse = {}
        for u, (r, dt, beta) in enumerate(order):
            firstuse.setdefault(("Pr", 0, beta, r), u)
            for h in range(2): firstuse.setdefault(("Vr", 0, beta, dt, h), u)
        prs = sorted([p_read(a4(fP(beta, r)), beta, r, 0) for r in range(6) for beta in range(4)], key=lambda o: firstuse[o.tag])
        lrs = [gather_reads(r, vS(0, 0) + 4*r, SC1 - SC0, "Lr") for r in range(6)]
        for o in lrs: firstuse[o.tag] = 12
        npre = 2 if fs else 4
        F += prs[:npre]
        for i, (m, o) in enumerate(vd):
            g = 1 + 4 * i
            if m is not None: G.put_first(g - 1, Op(f"s_mov_b32 m0, s{m}"))
            G.put_mem(g, o)
        rest = sorted(prs[npre:] + vr + lrs, key=lambda o: firstuse[o.tag])
        gi = 0
        for o in rest:
            lo_g = max(gi, firstuse[o.tag] - 14)
            if o.tag[0] == "Vr" and o.tag[2] // 2 != hfirst and vd: lo_g = max(lo_g, firstuse[o.tag] - 8)
            g = max(lo_g, 0)
            while G.cost(g) >= 8: g += 1
            G.put_mem(g, o); gi = g; o.gap = g
        tasks = []
        setup = [f"v_and_b32 v{t0}, 15, v{vLane}", f"v_lshrrev_b32 v{t1}, 4, v{vLane}", f"v_mul_u32_u24 v{t0}, {OST}, v{t0}",
                 f"v_lshrrev_b32 v{t2}, 3, v{vLane}", f"v_lshl_add_u32 v{t0}, v{t1}, 3, v{t0}", f"v_mul_u32_u24 v{t2}, {OST}, v{t2}",
                 f"v_add_u32 v{vOw}, s{sKm0[0]}, v{t0}", f"v_and_b32 v{t1}, 7, v{vLane}", f"v_lshl_add_u32 v{t2}, v{t1}, 4, v{t2}",
                 f"v_add_u32 v{vOr}, s{sKm0[0]}, v{t2}"]
        prev = None
        for i, x in enumerate(setup):
            prev = Task(Op(x), [prev] if prev else [], 0, -50 + i); tasks.append(prev)
        for i in range(12): G.put_first(2 + i * 2, Op(f"s_mov_b32 s{sKo(0,0) + i}, {i * 4096}"), 0)
        lg = max(o.gap for o in lrs) + 5
        rc = []
        for r in range(6):
            b = vS(0, 0) + 4 * r
            x = Task(Op(f"v_add_f32 v{b}, v{b}, v{b+1}", needs=[("Lr", 0, rr) for rr in range(6)]), [], lg, r)
            y = Task(Op(f"v_add_f32 v{b+2}, v{b+2}, v{b+3}", needs=[("Lr", 0, rr) for rr in range(6)]), [], lg, r + 0.1)
            z = Task(Op(f"v_add_f32 v{b}, v{b}, v{b+2}"), [x, y], lg, r + 0.2)
            w = Task(Op(f"v_rcp_f32 v{vL[r]}, v{b}"), [z], lg, r + 0.3)
            tasks += [x, y, z, w]; rc.append(w)
        lastuse = {}
        for u, (r, dt, beta) in enumerate(order): lastuse[(r, dt)] = u
        memops = []
        for (r, dt), u in sorted(lastuse.items(), key=lambda x: x[1]):
            b = vO(dt, r); e = u + 3
            if e > 95: e = 97
            mu = [Task(Op(f"v_mul_f32 v{b+i}, v{b+i}, v{vL[r]}"), [rc[r]], e, 100 + u * 10 + i) for i in range(4)]
            cv = [Task(Op(f"v_cvt_pk_bf16_f32 v{b+i}, v{b+2*i}, v{b+2*i+1}"), mu[:2*i+2], e, 100 + u * 10 + 14 + i) for i in range(2)]
            cv[1].deps.append(cv[0])
            tasks += mu + cv
            memops.append((r, dt, cv))
        G.cap = cfg.fcap
        G.schedule(tasks, NG - 1, NG)
        allK = [("K", 1, q, n) for q in range(4) for n in range(4)] + [("Kr", 1, 0, s) for s in range(8)]
        if not wrap[3]: allK += [("K", 2, q, n) for q in range(4) for n in range(2)]
        lastw = {}
        for r, dt, cv in memops:
            g = max(cv[1].gap, prev.gap) + 1
            G.put_mem(g, Op(f"ds_write_b64 v{vOw}, {v4(vO(dt, r), 2)} offset:{2048 + r*16*OST + dt*32}", tag=("Ow", 0, r, dt), needs=allK, cost=12))
            lastw[r] = max(lastw.get(r, 0), g)
        for r in range(6):
            g = lastw[r] + 1
            rb = vPf(0, 0) + 8 * (r % 3)
            for i in range(2):
                G.put_mem(g, Op(f"ds_read_b128 {v4(rb + 4*i)}, v{vOr} offset:{2048 + (r*16 + 8*i)*OST}", tag=("Or", 0, r, i)))
                G.put_mem(min(g + 5 + i, G.n - 1), Op(sq(f"buffer_store_dwordx4 {v4(rb + 4*i)}, v{vOut}, {s4(sO)}, s{sKo(0,0) + r*2 + i} offen {cfg.opol}"), needs=[("Or", 0, r, i)]))
        for u, (r, dt, beta) in enumerate(order):
            A(mfma(v4(vO(dt, r)), a4(fV(beta, dt)), a4(fP(beta, r)), v4(vO(dt, r))),
              needs=[("Pr", 0, beta, r), ("Vr", 0, beta, dt, 0), ("Vr", 0, beta, dt, 1)])
            F += G.ops(u)
        F += G.ops(96)
        A("s_nop 7")
        for g in range(97, G.n): F += G.ops(g)
        if cfg.verbose: print("final costs", [G.cost(g) for g in range(G.n)], file=sys.stderr)
        if cfg.stamps:
            F += stamp(cfg, 5)
            F.append(W(vm=0))
            F += stamp(cfg, 6)
            A("s_memrealtime s[6:7]")
            F.append(W(lgkm=0))
            A(f"s_mov_b32 s{sWS+2}, {256 if cfg.dbg else 0x1000000}"); A(f"s_mov_b32 s{sWS+3}, 0x20000")
            A("v_mov_b32 v0, s34"); A("v_mov_b32 v1, s6")
            if cfg.lstamps:
                for i in range(7): A(f"v_readlane_b32 s{sSt + 2*i}, v{vDbg}, {i}")
                A("s_nop 3")
            for i in range(1, 7):
                A(f"s_sub_u32 s{sX}, s{sSt+2*i}, s{sSt}")
                A(f"v_mov_b32 v{1+i}, s{sX}")
            if cfg.dbg:
                A(f"s_mov_b32 s{sX}, 4096"); A("s_cmp_eq_u32 s2, 0"); A(f"s_cselect_b32 s{sX}, 0, s{sX}")
                A("s_cmp_eq_u32 s2, 200"); A(f"s_cselect_b32 s{sX}, 32, s{sX}")
                A(f"s_lshl_b32 s{sY}, s{sW}, 12"); A(f"s_add_u32 s{sX}, s{sX}, s{sY}")
            else:
                A(f"s_lshl_b32 s{sX}, s2, 7"); A(f"s_lshl_b32 s{sY}, s{sW}, 5"); A(f"s_add_u32 s{sX}, s{sX}, s{sY}")
            A(f"v_mov_b32 v8, s{sX}")
            A(f"v_cmp_eq_u32 vcc, 0, v{vLane}")
            A("s_and_saveexec_b64 s[4:5], vcc")
            A(f"buffer_store_dwordx4 v[0:3], v8, {s4(sWS)}, 0 offen")
            A(f"buffer_store_dwordx4 v[4:7], v8, {s4(sWS)}, 0 offen offset:16")
        A("s_endpgm")
        A(f"L_code_end{sfx}:")

        N = [Op(f"L_notify{sfx}:"), Op(f"v_mov_b32 v{vFlag}, 1"), Op(f"ds_write_b32 v{vFlagA}, v{vFlag}"), W(lgkm=0), Op(f"s_branch L_notified{sfx}")]
        def strip(ops):
            for o in ops: o.needs = []; o.tag = None
            return ops
        S = [Op(f"L_slow{sfx}:"), W(lgkm=0), Op("s_nop 7")]
        for tau in range(3): S += strip(max_local(tau, False, X0))
        S += [W(lgkm=0), Op("s_barrier")]
        S.append(Op(f"v_mov_b32 v{vFlag}, 0"))
        S.append(Op(f"ds_write_b32 v{vFlagA}, v{vFlag}"))
        gb = vPf(0, 0)
        for r in range(6): S += strip([gather_reads(r, gb + 4*r, 0, "Mr")])
        S.append(W(lgkm=0))
        for r in range(6): S.append(Op(f"v_max3_f32 v{gb+4*r}, v{gb+4*r}, v{gb+4*r+1}, v{gb+4*r+2}"))
        for r in range(6): S.append(Op(f"v_max3_f32 v{gb+4*r}, v{gb+4*r}, v{gb+4*r+3}, v{vMc[r]}"))
        for r in range(6): S.append(Op(f"v_sub_f32 v{X0+r}, v{vMc[r]}, v{gb+4*r}"))
        for r in range(6): S.append(Op(f"v_exp_f32 v{X0+r}, v{X0+r}"))
        for r in range(6): S.append(Op(f"v_mov_b32 v{vMc[r]}, v{gb+4*r}"))
        for r in range(6): S.append(Op(f"v_mul_f32 v{vL[r]}, v{vL[r]}, v{X0+r}"))
        for r in range(6):
            for dt in range(4):
                for i in range(4): S.append(Op(f"v_mul_f32 v{vO(dt,r)+i}, v{vO(dt,r)+i}, v{X0+r}"))
        tasks, _ = softmax_tasks([(a, r) for r in range(6) for a in range(2)], [0] * 12, {r: 2 * r for r in range(6)})
        S += linear(tasks)
        S += [Op(f"s_cmp_lt_u32 s{sT}, 7"), Op(f"s_branch L_slow_ret{sfx}")]

        trace = [(o, -1) for o in H + P]
        for t in range(7): trace += [(o, t) for o in Lp]
        trace += [(o, 7) for o in F]
        derive_waits(trace)
        errs = check_hazards(H + P + Lp + Lp + F) + check_hazards(Lp + S + Lp) + check_hazards(Lp + S + F)
        for e in sorted(set(errs)): print("HAZARD", e, file=sys.stderr)
        assert not errs
        out += emit(P) + emit(Lp) + emit(F) + emit(N) + emit(S)
    hdr = [l for l in open("standalone__gqa_softmax__near_ridge.s.ref").read().splitlines() if l.startswith(";") and "@launch grid" not in l] if cfg.refhdr else []
    L = header(256, 256, LDS_TOTAL, hdr)
    L += emit(H) + out + ["L_end:", "    s_endpgm"]
    L += footer(512, 256)
    return "\n".join(L) + "\n"

from gen2 import analyze

if __name__ == "__main__":
    cfg = Cfg()
    out = sys.argv[1]
    for a in sys.argv[2:]:
        k, v = a.split("=", 1)
        if not isinstance(getattr(Cfg, k), str): v = eval(v)
        setattr(cfg, k, v)
    open(out, "w").write(build(cfg))
```

```python
import sys, math, struct
from fw import *
from asmlib import header, footer, NAME

def f2u(x): return struct.unpack("<I", struct.pack("<f", x))[0]

class Cfg:
    kpol = ""; vpol = ""; qpol = ""; opol = "nt"
    stamps = False; dbg = False; lstamps = None; lt = 3; spin_at = -1; spin_us = 0; rt = 0; smode = 0
    thresh = 65536.0
    refhdr = False
    cpf = 1
    verbose = 0
    mask = 1
    ga = 184
    gb = 74
    pwg = [0, 12, 24, 36, 48, 60]
    dpos = [48 * p + 2 + (i * 46) // 8 for p in range(4) for i in range(8)]
    drot = 0
    rd0 = [3, 4, 4, 31]
    rdspan = [8, 38, 38, 8]
    ovf0 = 11
    fcap = 8
    mask2 = 0
    klate = 1
    npre = 12
    pgs = [1, 5, 9, 13, 18, 22, 26, 30]
    pcap = 12

KW = 16896; KB = 0
VB = 4 * KW; VW = 16384
PB = VB + 4 * VW
SC0 = PB + 24576
SC1 = SC0 + 2048
LDS_TOTAL = SC1 + 2048
FLAG = 1024
KIMM = [0, 1056, 2112, 3168]
def q_quarter_base(tau, q):
    if tau == 0: return PB + q * 4224
    return VB + q * VW + VW - (3 - tau) * 4224
OST = 144
PL = 4224

def vO(dt, r): return (r * 4 + dt) * 4
def vS(a, r): return 96 + (r * 2 + a) * 4
def vPk(r): return 144 + 4 * r
def vPf(slot, b): return 168 + slot * 8 + 4 * b
vMc = list(range(192, 198)); vL = list(range(198, 204)); vTs = list(range(204, 210))
vKrd, vPrd, vPwr, vKdma, vVdma, vSx, vSr, vFlagA, vFlag, vOut, vLane, vA, vB = range(210, 223)
vVrd = [224, 225, 226, 227]
vDbg = 223
T0 = 228; NT = 12
X0 = 240
def aQ(r, s): return (r * 8 + s) * 4
SETS = [192, 224]
sQ, sK, sV, sO = 12, 16, 20, 24
sW, sG, sU, sT, sC, sTh = 28, 29, 30, 31, 32, 33
sKm0 = [36, 37, 38, 39]; sVm0 = [40, 41, 42, 43]
def sKo(q, n): return 44 + q * 4 + n
def sVo(p): return 60 + p
sX, sY, sZ = 76, 77, 78
sKs, sVs, sKd, sVd, sM = 79, 80, 81, 82, 83
BIAS = 4096
sMq = 33
sWS = 84; sSt = 88

def v4(b, n=4): return f"v[{b}:{b+n-1}]"
def a4(b, n=4): return f"a[{b}:{b+n-1}]"
def s4(b): return f"s[{b}:{b+3}]"
def sq(t): return " ".join(t.split())
def mfma(d, a, b, c): return f"v_mfma_f32_16x16x32_bf16 {d}, {a}, {b}, {c}"

def k_read(a, s, toff):
    return Op(f"ds_read_b128 {a4(SETS[a] + 4*s)}, v{vKrd} offset:{a*8448 + s*64}", tag=("Kr", toff, a, s),
              needs=[("K", toff, 2*a + u, j) for u in range(2) for j in range(4)])
def k_dma(cfg, q, n, toff, needs=()):
    return Op(sq(f"buffer_load_dwordx4 v{vKdma}, {s4(sK)}, s{sKo(q,n)} offen offset:{KIMM[n]} {cfg.kpol} lds"), tag=("K", toff, q, n), needs=needs)
def v_dma(cfg, p, toff, needs=()):
    return Op(sq(f"buffer_load_dwordx4 v{vVdma}, {s4(sV)}, s{sVo(p)} offen offset:{(p%4)*1024} {cfg.vpol} lds"), tag=("V", toff, p), needs=needs)
def v_read(dstbase, beta, dt, half, toff):
    p = 4 * beta + 2 * half
    return Op(f"ds_read_b64_tr_b16 {a4(dstbase + 2*half, 2)}, v{vVrd[dt]} offset:{p*1024}", tag=("Vr", toff, beta, dt, half),
              needs=[("V", toff, p), ("V", toff, p + 1)])
def p_read(dst, beta, r, toff):
    return Op(f"ds_read_b128 {dst}, v{vPrd} offset:{(beta*6 + r)*1024}", tag=("Pr", toff, beta, r))
def p_write(r, toff):
    return Op(f"ds_write_b128 v{vPwr}, {v4(vPk(r))} offset:{r*1024}", tag=("Pw", toff, r))

class Task:
    def __init__(self, op, deps=(), earliest=0, prio=0):
        self.op = op; self.deps = list(deps); self.earliest = earliest; self.prio = prio; self.gap = None

def softmax_tasks(quads, earliest, first_quad_of):
    tasks = []; fm = []; ex = []; user = []
    last_add = {}
    e = 0
    for qi, (a, r) in enumerate(quads):
        for i in range(4):
            t = T0 + e % NT
            deps = user[e - NT] if e >= NT else []
            f = Task(Op(f"v_fma_f32 v{t}, v{vS(a,r)+i}, s{sC}, -v{vMc[r]}"), deps, earliest[qi], e * 4)
            x = Task(Op(f"v_exp_f32 v{t}, v{t}"), [f], 0, e * 4 + 5)
            fm.append(f); ex.append(x); user.append([])
            tasks += [f, x]
            first = first_quad_of[r] == qi
            if first and i == 0: pass
            else:
                if first and i == 1:
                    ad = Task(Op(f"v_add_f32 v{vTs[r]}, v{T0 + (e-1) % NT}, v{t}"), [ex[e - 1], x], 0, e * 4 + 10)
                    user[e - 1].append(ad)
                    ad.first_ts = r
                else:
                    ad = Task(Op(f"v_add_f32 v{vTs[r]}, v{vTs[r]}, v{t}"), [x, last_add[r]], 0, e * 4 + 10)
                last_add[r] = ad; user[e].append(ad); tasks.append(ad)
            if i % 2 == 1:
                c = Task(Op(f"v_cvt_pk_bf16_f32 v{vPk(r) + 2*a + i//2}, v{T0 + (e-1) % NT}, v{t}"), [ex[e - 1], x], 0, e * 4 + 11)
                c.pk = (r, 2 * a + i // 2)
                user[e - 1].append(c); user[e].append(c); tasks.append(c)
            e += 1
    return tasks, last_add

def linear(tasks):
    return [t.op for t in sorted(tasks, key=lambda t: t.prio)]

class Gaps:
    def __init__(self, n, cap=8):
        self.n = n; self.cap = cap
        self.first = [None] * n; self.mem = [[] for _ in range(n)]; self.val = [[] for _ in range(n)]; self.tail = [[] for _ in range(n)]
    def cost(self, g): return sum(o.cost for o in self.mem[g] + self.val[g] + self.tail[g])
    def put_first(self, g, op, lo=None):
        lo = g if lo is None else lo
        for x in range(g, lo - 1, -1):
            if self.first[x] is None:
                self.first[x] = op; return x
            if op.kind == "pseudo" and self.first[x].kind == "pseudo":
                self.first[x].needs += op.needs; return x
        raise ValueError(f"no free first slot near {g} for {op.text}")
    def put_mem(self, g, op): self.mem[g].append(op)
    def schedule(self, tasks, deadline, ovf0=0):
        todo = sorted(tasks, key=lambda t: t.prio)
        for g in range(self.n):
            room = self.cap - self.cost(g)
            if g < ovf0: pass
            elif g < deadline:
                rem = sum(t.op.cost for t in todo)
                capleft = sum(max(0, self.cap - self.cost(x)) for x in range(g, deadline))
                if rem > capleft - 12: room += 4
                if rem > capleft + 2 * (deadline - g): room += 4
            else: room = 1000
            while True:
                ready = [t for t in todo if t.earliest <= g and all(d.gap is not None and (d.gap < g or g >= deadline) for d in t.deps) and t.op.cost <= room]
                if not ready: break
                big = [t for t in ready if t.op.cost == 8]
                t = big[0] if big and big[0].prio <= ready[0].prio + 40 else ready[0]
                t.gap = g; self.val[g].append(t.op); room -= t.op.cost; todo.remove(t)
        assert not todo, [t.op.text for t in todo]
    def ops(self, g):
        return ([self.first[g]] if self.first[g] else []) + self.mem[g] + self.val[g] + self.tail[g]

def red_pair(x0, x1, t, op):
    return [[Op(f"v_permlane32_swap_b32 v{x0}, v{x1}")], [Op(f"{op} v{x0}, v{x0}, v{x1}")], [Op(f"v_mov_b32 v{t}, v{x0}")],
            [Op(f"v_permlane16_swap_b32 v{x0}, v{t}")], [Op(f"{op} v{x0}, v{x0}, v{t}")]]

def max_local(tau, first, base):
    o = []
    m = [base, base + 1]
    for i in range(4):
        for k in range(2):
            r = 2 * tau + k; b = vS(0, r)
            if i == 0: o.append(Op(f"v_max3_f32 v{m[k]}, v{b}, v{b+1}, v{b+2}"))
            elif i < 3: o.append(Op(f"v_max3_f32 v{m[k]}, v{m[k]}, v{b+2*i+1}, v{b+2*i+2}"))
            else: o.append(Op(f"v_max_f32 v{m[k]}, v{m[k]}, v{b+7}"))
    st = red_pair(m[0], m[1], base + 2, "v_max_f32")
    o += [Op("s_nop 1")] + st[0] + st[1] + st[2] + [Op("s_nop 1")] + st[3] + st[4]
    o.append(Op(f"v_mul_f32 v{m[0]}, s{sC}, v{m[0]}"))
    o.append(Op(f"ds_write_b32 v{vSx}, v{m[0]} offset:{tau*512}", tag=("Mw", 0, tau), cost=8))
    return o
def gather_reads(r, dst, off, tag):
    return Op(f"ds_read_b128 {v4(dst)}, v{vSr} offset:{off + r*256}", tag=(tag, 0, r))

def stamp(cfg, i, mode=0):
    if not cfg.stamps or (i and mode != cfg.smode): return []
    o = [Op(f"{'s_memrealtime' if cfg.rt else 's_memtime'} s[{sSt + 2*i}:{sSt + 2*i + 1}]")]
    if cfg.spin_at == i:
        o += [Op("s_waitcnt lgkmcnt(0)", "salu"), Op(f"L_spin{i}_{id(o)}:"), Op("s_sleep 2"), Op("s_memrealtime s[86:87]"), Op("s_waitcnt lgkmcnt(0)", "salu"),
              Op("s_sub_u32 s86, s86, s34"), Op(f"s_cmp_lt_u32 s86, {int(cfg.spin_us*100)}"), Op(f"s_cbranch_scc1 L_spin{i}_{id(o)}")]
    return o

def fV(beta, dt): return (dt * 4 + beta) * 4
def fP(beta, r): return 64 + (r * 4 + beta) * 4
vPlw, vPlr = vA, vB
def pl_write(r): return Op(f"ds_write_b128 v{vPlw}, {v4(vPk(r))} offset:{r*1024}", tag=("Plw", 0, r))
def pl_read(beta, r, toff): return Op(f"ds_read_b128 {a4(fP(beta, r))}, v{vPlr} offset:{beta*KW + r*1024}", tag=("Plr", toff, beta, r))
def l_publish():
    o = []
    for r in range(6): o.append(Op(f"v_add_f32 v{X0 + r}, v{vL[r]}, v{vTs[r]}"))
    sts = [red_pair(X0 + 2*tau, X0 + 2*tau + 1, X0 + 6 + tau, "v_add_f32") for tau in range(3)]
    for i in range(5):
        for tau in range(3): o += sts[tau][i]
    w = [Op(f"ds_write_b32 v{vSx}, v{X0 + 2*tau} offset:{SC1 - SC0 + tau*512}", tag=("Lw", 0, tau), cost=8) for tau in range(3)]
    return o, w

def dma_plan(cfg):
    seq = [(c, i) for c in (2, 3, 0, 1) for i in range(8)]
    plan = []
    for k in range(32):
        j = k + cfg.drot
        c, i = seq[j % 32]
        wrap = 1 if (c in (2, 3) and j < 32) else 0
        plan.append((c, i, wrap))
    return plan

def body(cfg):
    sfx = ""
    G = Gaps(192)
    MF = []
    for a in range(2):
        for r in range(6):
            for s in range(8):
                MF.append(Op(mfma(v4(vS(a, r)), a4(SETS[a] + 4*s), a4(aQ(r, s)), "0" if s == 0 else v4(vS(a, r))),
                             needs=[("Kr", 1, a, s)] if r == 0 else []))
    for hb in range(2):
        for r in range(6):
            k = 6 * hb + r
            for dt in range(4):
                for b in range(2):
                    beta = 2 * hb + b
                    n = [("Pr", 0, beta, r)] if dt == 0 else []
                    if r == 0: n += [("Vr", 0, beta, dt, 0), ("Vr", 0, beta, dt, 1)]
                    MF.append(Op(mfma(v4(vO(dt, r)), a4(SETS[hb] + 4*(2*dt + b)), v4(vPf(k % 3, b)), v4(vO(dt, r))), needs=n))
    GA = cfg.ga; GB = cfg.gb
    pwg = cfg.pwg
    for r in range(6): G.put_mem(pwg[r], p_write(r, 0))
    G.put_mem(GB, Op("s_barrier", needs=[("Pw", 0, r) for r in range(6)]))
    G.put_first(GB, Need([("Pw", 0, r) for r in range(6)]))
    G.put_mem(GA, Op("s_barrier", needs=[("Pr", 0, 2, 5), ("Pr", 0, 3, 5)]))
    G.put_mem(GA + 1, Op(f"ds_read_b32 v{vFlag}, v{vFlagA}", tag=("F", 0)))
    def free_at(g, lim=0):
        while G.cost(g) > lim: g += 1
        return g
    def chunk_dma(c, i, wrap):
        if c in (0, 3):
            a = 1 if c == 0 else 0; toff = (1 if c == 0 else 2) - wrap; u, j = 2*a + i // 4, i % 4
            rd = [("Kr", toff, a, s) for s in range(8)]
            return (sKm0[u] if j == 0 else None), k_dma(cfg, u, j, toff + 1, needs=rd)
        hb = c - 1; p = 8 * hb + i; toff = -wrap
        rd = [("Vr", toff, p // 4, dt, (p % 4) // 2) for dt in range(4)]
        return (sVm0[p // 4] if p % 4 == 0 else None), v_dma(cfg, p, toff + 1, needs=rd)
    lastd = {}
    rd0 = list(cfg.rd0); rdspan = list(cfg.rdspan)
    prevg = -1
    for k, (c, i, wrap) in enumerate(dma_plan(cfg)):
        g = free_at(max(cfg.dpos[k], prevg + 2))
        m, o = chunk_dma(c, i, wrap)
        if k == 0 and m is None: m = sVm0[(8 + i) // 4]
        if m is not None: G.put_first(g - 1, Op(f"s_mov_b32 m0, s{m}"), prevg + 1)
        G.put_mem(g, o); prevg = g
        if i == 7: lastd[c] = g
    for k in range(12):
        hb, r = divmod(k, 6)
        g = 96 + 8 * (k - 2)
        for b in range(2):
            g = free_at(g); G.put_mem(g, p_read(v4(vPf(k % 3, b)), 2*hb + b, r, 0)); g += 1
        assert g <= 96 + 8 * k - 6, (k, g)
        G.put_first(96 + 8 * k - 1, Need([("Pr", 0, 2*hb + b, r) for b in range(2)]), 96 + 8 * k - 4)
    for c in range(4):
        if c in (0, 3):
            a = 1 if c == 0 else 0; toff = 1 if c == 0 else 2
            rds = [[k_read(a, 2*q, toff), k_read(a, 2*q + 1, toff)] for q in range(4)]
        else:
            hb = c - 1
            rds = [[v_read(SETS[hb] + 4*(2*dt + j // 2), 2*hb + j // 2, dt, j % 2, 0) for dt in range(4)] for j in range(4)]
        for j in range(4):
            g = 48 * c + rd0[c] + (j * rdspan[c]) // 4
            for x, o in enumerate(rds[j]):
                dbl = False
                g = free_at(g, 4 if dbl else 0)
                if x == 0: G.put_first(g, Need(list(o.needs)), g - 3)
                G.put_mem(g, o)
                if not dbl: g += 1
                elif G.cost(g) >= 8: g += 2
            assert g <= 48 * c + 44, (c, j, g)
        G.put_first(48 * c + 47, Need([o.tag for rr in rds for o in rr]), 48 * c + 45)
    quads = [(a, r) for a in range(2) for r in range(6)]
    tasks, last_add = softmax_tasks(quads, [8 * i + 11 for i in range(12)], {r: r for r in range(6)})
    ladd = [Task(Op(f"v_add_f32 v{vL[r]}, v{vL[r]}, v{vTs[r]}"), [], 0, -100 + r) for r in range(6)]
    for t in tasks:
        if hasattr(t, "first_ts"): t.deps.append(ladd[t.first_ts])
        if hasattr(t, "pk"): t.earliest = max(t.earliest, pwg[t.pk[0]] + 1)
    tasks += ladd
    c1 = Task(Op(f"v_max3_f32 v{X0+12}, v{vTs[0]}, v{vTs[1]}, v{vTs[2]}"), [last_add[r] for r in range(3)], 0, 150)
    c2 = Task(Op(f"v_max3_f32 v{X0+12}, v{X0+12}, v{vTs[3]}, v{vTs[4]}"), [c1, last_add[3], last_add[4]], 0, 190)
    c3 = Task(Op(f"v_max_f32 v{X0+12}, v{X0+12}, v{vTs[5]}"), [c2, last_add[5]], 0, 1000)
    c4 = Task(Op(f"v_cmp_nge_f32 vcc, s{sTh}, v{X0+12}"), [c3], 0, 1001)
    tasks += [c1, c2, c3, c4]
    for c, v in ((0, vKdma), (2, vVdma)):
        assert lastd[c] < 191
        G.val[lastd[c] + 1].append(Op(f"v_add_u32 v{v}, s3, v{v}"))
    G.schedule(tasks, GA - 3, cfg.ovf0)
    gbr = c4.gap + 2
    while G.first[gbr] is not None: gbr += 1
    assert gbr <= GA, (c4.gap, gbr)
    G.first[gbr] = Op(f"s_cbranch_vccnz L_notify{sfx}")
    G.mem[gbr].insert(0, Op(f"L_notified{sfx}:"))
    G.put_first(149, Op(f"s_add_u32 s{sT}, s{sT}, 1"), 146)
    G.put_first(156, Op(f"s_cmp_lt_u32 s{sT}, 6"), 152)
    G.put_first(189, Need([("F", 0)]))
    G.val[189].append(Op(f"v_cmp_ne_u32 vcc, 0, v{vFlag}", needs=[("F", 0)]))
    costs = [G.cost(g) for g in range(192)]
    if cfg.verbose: print("loop est cycles", sum(max(16, 8 + c) for c in costs), costs, file=sys.stderr)
    L = []
    for g in range(192):
        L.append(MF[g])
        if cfg.lstamps and g in cfg.lstamps:
            i = cfg.lstamps.index(g)
            L.append(Op(f"s_memtime s[{4 + 2*i if i < 4 else 88 + 2*(i-4) + 8}:{5 + 2*i if i < 4 else 89 + 2*(i-4) + 8}]"))
        L += G.ops(g)
    return L

def build(cfg):
    P = []; A = lambda t, **k: P.append(Op(t, **k))
    sQo = [79, 80, 81, 82]
    vQd = X0 + 15
    t0, t1, t2, t3 = T0, T0 + 1, T0 + 2, T0 + 3
    A("s_cmp_ge_u32 s2, 256"); A("s_cbranch_scc1 L_end")
    if cfg.stamps:
        A("s_memrealtime s[34:35]")
        P += stamp(cfg, 0)
        A(f"s_load_dwordx2 s[{sWS}:{sWS+1}], s[0:1], {32 if cfg.dbg else 40}")
    A("s_load_dwordx8 s[4:11], s[0:1], 0")
    if cfg.cpf:
        A(f"s_getpc_b64 s[{sX}:{sX+1}]")
        A("L_pc:")
        A(f"v_lshlrev_b32 v{X0}, 7, v0")
        A(f"v_min_u32 v{X0}, L_code_end - L_pc - 4, v{X0}")
        A(f"v_mov_b32 v{X0+1}, s{sX+1}")
        A(f"v_add_co_u32 v{X0}, vcc, s{sX}, v{X0}")
        A(f"v_and_b32 v{vLane}, 63, v0")
        A(f"v_lshrrev_b32 v{vA}, 6, v0")
        A(f"v_addc_co_u32 v{X0+1}, vcc, 0, v{X0+1}, vcc")
        A(f"global_load_dword v{vDbg}, v[{X0}:{X0+1}], off")
    else:
        A(f"v_and_b32 v{vLane}, 63, v0")
        A(f"v_lshrrev_b32 v{vA}, 6, v0")
        A("s_nop 0")
    A(f"v_readfirstlane_b32 s{sW}, v{vA}")
    A(f"s_and_b32 s{sU}, s2, 7"); A(f"s_lshl_b32 s{sU}, s{sU}, 5"); A(f"s_lshr_b32 s{sX}, s2, 3"); A(f"s_add_u32 s{sU}, s{sU}, s{sX}")
    A(f"v_lshrrev_b32 v{t1}, 5, v{vLane}")
    A(f"v_xor_b32 v{t1}, v{t1}, v{vLane}")
    A(f"v_lshlrev_b32 v{vKdma}, 4, v{t1}")
    A(f"s_mul_i32 s{sY}, s{sU}, 49152")
    A(f"s_lshl_b32 s{sX}, s{sW}, 12")
    A(f"s_add_u32 s{sX}, s{sY}, s{sX}")
    A(f"v_add_u32 v{vQd}, s{sX}, v{vKdma}")
    A(f"s_movk_i32 s{sQo[0]}, 96")
    A(f"s_mul_i32 s{sX}, s{sW}, 4224")
    A(f"s_add_u32 m0, s{sX}, {PB}")
    A(f"s_mov_b32 s{sQ+2}, {12582912 + 96}"); A(f"s_mov_b32 s{sQ+3}, 0x20000")
    A(f"s_lshl_b32 s{sKm0[0]}, s{sX}, 2")
    A(f"s_lshr_b32 s{sZ}, s{sU}, 2"); A(f"s_lshl_b32 s{sZ}, s{sZ}, 19")
    P.append(W(lgkm=0))
    A(f"s_sub_u32 s{sQ}, s4, 96"); A(f"s_subb_u32 s{sQ+1}, s5, 0")
    P += stamp(cfg, 1, 3)
    qso = [f"s{sQo[0]}", "64", "32", "0"]
    def q_dma(tau):
        return [Op(sq(f"buffer_load_dwordx4 v{vQd}, {s4(sQ)}, {qso[n]} offen offset:{KIMM[n]} {cfg.qpol} lds"), tag=("Q", 0, tau, n)) for n in range(4)]
    q0 = q_dma(0)
    P.append(q0[0])
    A(f"s_and_b32 s{sM}, s{sU}, {1 if cfg.mask else 0}"); A(f"s_mul_i32 s{sM}, s{sM}, 0xa000")
    if cfg.mask2:
        A(f"s_bfe_u32 s{sX}, s{sU}, 0x10001"); A(f"s_mul_i32 s{sX}, s{sX}, {cfg.mask2}"); A(f"s_xor_b32 s{sM}, s{sM}, s{sX}")
    A(f"s_lshl_b32 s{sX}, s{sW}, 14")
    A(f"s_add_u32 s{sVm0[0]}, s{sX}, {VB}")
    P.append(q0[1])
    A(f"s_and_b32 s{sT}, s{sM}, 0xc000"); A(f"s_xor_b32 s{sX}, s{sX}, s{sT}")
    A(f"s_add_u32 s{sX}, s{sX}, s{sZ}")
    A(f"v_add_u32 v{vKdma}, s{sX}, v{vKdma}")
    P.append(q0[2])
    A(f"s_sub_u32 s{sK}, s6, {BIAS}"); A(f"s_subb_u32 s{sK+1}, s7, 0")
    A(f"s_add_u32 s{sK+2}, s{sZ}, {524288 + BIAS}"); A(f"s_mov_b32 s{sK+3}, 0x20000")
    P.append(q0[3])
    A(f"s_and_b32 s{sT}, s{sM}, 0x3000")
    for u in range(2):
        if u: A(f"s_add_u32 s{sKm0[u]}, s{sKm0[0]}, {u*4224}"); A(f"s_xor_b32 s{sT}, s{sT}, 0x1000")
        A(f"s_mov_b32 m0, s{sKm0[u]}")
        for j in range(4):
            A(f"s_add_u32 s{sKo(u,j)}, s{sT}, {BIAS - 32*j}")
            P.append(k_dma(cfg, u, j, 1))
    P += stamp(cfg, 2, 3)
    for u in (2, 3):
        A(f"s_xor_b32 s{sT}, s{sT}, {0x3000 if u == 2 else 0x1000}")
        A(f"s_add_u32 s{sKm0[u]}, s{sKm0[0]}, {u*4224}")
        for j in range(4): A(f"s_add_u32 s{sKo(u,j)}, s{sT}, {BIAS - 32*j}")
    A(f"s_and_b32 s{sQo[1]}, s{sW}, 1"); A(f"s_lshl_b32 s{sQo[1]}, s{sQo[1]}, 7"); A(f"s_sub_u32 s{sQo[1]}, s{sVm0[0]}, s{sQo[1]}")
    A(f"v_add_u32 v{vQd}, 0x4000, v{vQd}")
    def k_half(a, toff, needs=()):
        return [(sKm0[2*a + u] if j == 0 else None, k_dma(cfg, 2*a + u, j, toff, needs=needs)) for u in range(2) for j in range(4)]
    def m0op(m): return Op(m if isinstance(m, str) else f"s_mov_b32 m0, s{m}")
    def flat(dm):
        o = []
        for m, d in dm:
            if d is None: o.append(m); continue
            if m is not None: o += [m0op(m), Op("s_nop 0")]
            o.append(d)
        return o
    def qm0(tau): return f"s_add_u32 m0, s{sQo[1]}, {VW - (3 - tau) * 4224}"
    plan = dma_plan(cfg)
    krd = lambda a: [("Kr", 1, a, s) for s in range(8)]
    stream = k_half(1, 1) + [(Op(f"v_add_u32 v{vKdma}, 0x10000, v{vKdma}"), None)]
    stream += [(qm0(1) if n == 0 else None, o) for n, o in enumerate(q_dma(1))] + [(Op(f"v_add_u32 v{vQd}, 0x4000, v{vQd}"), None)]
    stream += [(qm0(2) if n == 0 else None, o) for n, o in enumerate(q_dma(2))]
    stream += k_half(0, 2, krd(0)) + k_half(1, 2, krd(1)) + [(Op(f"v_add_u32 v{vKdma}, 0x10000, v{vKdma}"), None)]
    stream += [(sVm0[p // 4] if p % 4 == 0 else None, v_dma(cfg, p, 1)) for p in range(7)]
    late = [(sVm0[p // 4] if p % 4 == 0 or p == 7 else None, v_dma(cfg, p, 1)) for p in range(7, 8 + cfg.drot)]
    def take():
        x = [stream.pop(0)]
        while stream and stream[0][1] is None: x.append(stream.pop(0))
        return x
    U = []; B = lambda t: U.append(Op(t))
    B(f"v_lshrrev_b32 v{t0}, 3, v{vLane}")
    B(f"v_lshlrev_b32 v{t0}, 9, v{t0}")
    B(f"v_lshrrev_b32 v{t1}, 4, v{vLane}")
    B(f"v_and_b32 v{t2}, 7, v{vLane}")
    B(f"s_lshl_b32 s{sG}, s{sW}, 7")
    B(f"s_add_u32 s{sY}, s{sY}, s{sG}")
    B(f"v_lshl_add_u32 v{vOut}, v{t2}, 4, v{t0}")
    B(f"v_add_u32 v{vOut}, s{sY}, v{vOut}")
    B(f"v_lshlrev_b32 v{t1}, 1, v{t1}")
    B(f"v_xor_b32 v{t3}, v{t2}, v{t1}")
    B(f"v_lshl_add_u32 v{vVdma}, v{t3}, 4, v{t0}")
    B(f"s_add_u32 s{sX}, s{sG}, s{sZ}")
    B(f"v_add_u32 v{vVdma}, s{sX}, v{vVdma}")
    B(f"v_bfe_u32 v{t0}, v{vLane}, 1, 3")
    B(f"v_mul_u32_u24 v{t0}, 1056, v{t0}")
    B(f"v_and_b32 v{t2}, 1, v{vLane}")
    B(f"v_lshl_add_u32 v{t0}, v{t2}, 9, v{t0}")
    B(f"v_lshrrev_b32 v{t1}, 4, v{vLane}")
    B(f"v_xor_b32 v{t2}, v{t2}, v{t1}")
    B(f"v_lshl_add_u32 v{t0}, v{t2}, 4, v{t0}")
    B(f"v_bfe_u32 v{t2}, v{vLane}, 3, 1")
    B(f"v_mul_u32_u24 v{t2}, {VW - 128 - 4224}, v{t2}")
    B(f"v_add_u32 v{vA}, {VB}, v{t0}")
    B(f"v_add_u32 v{vA}, v{vA}, v{t2}")
    B(f"v_add_u32 v{vB}, {PB}, v{t0}")
    B(f"v_add_u32 v{vKrd}, s{sKm0[0]}, v{t0}")
    B(f"v_and_b32 v{t0}, 15, v{vLane}")
    B(f"v_lshlrev_b32 v{t0}, 4, v{t0}")
    B(f"v_add_u32 v{vSr}, {SC0}, v{t0}")
    B(f"v_lshrrev_b32 v{t2}, 5, v{vLane}")
    B(f"v_lshl_add_u32 v{t2}, v{t2}, 8, v{vSr}")
    B(f"s_lshl_b32 s{sX}, s{sW}, 2")
    B(f"v_add_u32 v{vSx}, s{sX}, v{t2}")
    B(f"v_mov_b32 v{vFlagA}, {FLAG}")
    B(f"v_mov_b32 v{vFlag}, 0")
    B(f"ds_write_b32 v{vFlagA}, v{vFlag}")
    B(f"s_mov_b32 s{sC}, {hex(f2u(math.log2(math.e) / 16.0))}")
    B(f"s_mov_b32 s{sTh}, {hex(f2u(cfg.thresh))}")
    B(f"s_mov_b32 s{sT}, 0")
    B("s_mov_b32 s3, 0x10000")
    for b in range(1, 4): B(f"s_add_u32 s{sVm0[b]}, s{sVm0[0]}, {b*4096}")
    B(f"s_sub_u32 s{sV}, s8, {BIAS}"); B(f"s_subb_u32 s{sV+1}, s9, 0"); B(f"s_mov_b32 s{sV+2}, s{sK+2}"); B(f"s_mov_b32 s{sV+3}, 0x20000")
    if cfg.mask2:
        for p in range(16):
            B(f"s_xor_b32 s{sX}, s{sM}, {p*4096}"); B(f"s_add_u32 s{sVo(p)}, s{sX}, {BIAS - (p%4)*1024}")
    else:
        for hi in range(4):
            base = (hi >> 1) * 8 + (hi & 1) * 2
            B(f"s_xor_b32 s{sX}, s{sM}, {base*4096}")
            for lo in (0, 1, 4, 5):
                p = base + lo
                B(f"s_add_u32 s{sVo(p)}, s{sX}, {lo*4096 + BIAS - (p%4)*1024}")
    B(f"s_mov_b32 s{sO}, s10"); B(f"s_mov_b32 s{sO+1}, s11"); B(f"s_mov_b32 s{sO+2}, 12582912"); B(f"s_mov_b32 s{sO+3}, 0x20000")
    B(f"v_lshrrev_b32 v{t0}, 2, v{vLane}")
    B(f"v_lshlrev_b32 v{t0}, 7, v{t0}")
    B(f"v_bfe_u32 v{t2}, v{vLane}, 3, 2")
    B(f"v_lshl_add_u32 v{t0}, v{t2}, 5, v{t0}")
    B(f"v_and_b32 v{t2}, 3, v{vLane}")
    B(f"v_lshl_add_u32 v{t0}, v{t2}, 3, v{t0}")
    B(f"v_add_u32 v{vVrd[0]}, s{sVm0[0]}, v{t0}")
    for dt in range(1, 4): B(f"v_xor_b32 v{vVrd[dt]}, {dt*32}, v{vVrd[0]}")
    B(f"v_lshlrev_b32 v{t0}, 4, v{vLane}")
    B(f"v_add_u32 v{vPrd}, {PB}, v{t0}")
    B(f"s_mul_i32 s{sX}, s{sW}, 6144")
    B(f"v_add_u32 v{vPwr}, s{sX}, v{vPrd}")
    for i in range(96): B(f"v_mov_b32 v{i}, 0")
    for r in range(6): B(f"v_mov_b32 v{vL[r]}, 0")
    nz = len(U) // max(cfg.npre, 1) + 1
    k = 0
    for i in range(cfg.npre):
        e = min(len(U), (i + 1) * nz)
        while e < len(U) and U[e].text.startswith("s_subb"): e += 1
        P += U[k:e]; k = e
        P += flat(take())
    P += U[k:]
    P.append(W(lgkm=0))
    P += stamp(cfg, 4, 3)
    def q_read(r, s):
        tau, a = divmod(r, 2)
        base, off = (vB, a * 8448) if tau == 0 else (vA, 2 * a * VW + VW - (3 - tau) * 4224)
        return Op(f"ds_read_b128 {a4(aQ(r,s))}, v{base} offset:{off + s*64}", tag=("Qr", 0, r, s))
    def gather_max(tau):
        rd = [gather_reads(2*tau + k, X0 + 4 + 4*k, 0, "Mr") for k in range(2)]
        red = []
        for i in range(2):
            for k in range(2):
                b = X0 + 4 + 4 * k; r = 2 * tau + k
                if i == 0: red.append(Op(f"v_max3_f32 v{b}, v{b}, v{b+1}, v{b+2}", needs=[("Mr", 0, r)]))
                else: red.append(Op(f"v_max_f32 v{vMc[r]}, v{b}, v{b+3}"))
        return rd, red
    m0r, m1r, m2r = X0, X0 + 1, X0 + 2
    for tau in range(3):
        A("s_barrier", needs=[("Q", 0, tau, n) for n in range(4)] + ([("Mw", 0, tau - 1)] + [("Qr", 0, 2*tau - 2 + k, s) for k in range(2) for s in range(8)] if tau else []))
        if tau == 0: P += stamp(cfg, 1)
        P += stamp(cfg, 1 + 2 * tau, 1)
        if tau < 2: P += stamp(cfg, 5 + tau, 3)
        G = Gaps(33)
        order = [(2*tau + k, a, s) for a in range(2) for k in range(2) for s in range(8)]
        rds = []
        for u, (r, a, s) in enumerate(order):
            if tau == 0 and r == 0: rds.append((u, k_read(a, s, 1)))
            if a == 0: rds.append((u, q_read(r, s)))
        LA = 6
        if tau:
            rd, red = gather_max(tau - 1)
            P += rd
        P += [o for u, o in rds if u < LA]
        if tau: P += red
        for g in cfg.pgs:
            if not stream: break
            x = take()
            m, o = x[0]
            if m is not None: G.put_first(g - 1, m0op(m))
            G.put_mem(g, o)
            for y, _ in x[1:]: G.val[g].append(y)
        gi = 0
        for u, o in rds:
            if u < LA: continue
            while G.cost(gi) >= 8: gi += 1
            assert gi <= u - LA + 2, (tau, u, gi)
            G.put_mem(gi, o)
        tasks = []
        if tau:
            qs = [(a, 2*tau - 2 + k) for k in range(2) for a in range(2)]
            tasks, la = softmax_tasks(qs, [0] * 4, {2*tau - 2: 0, 2*tau - 1: 2})
            if tau == 2:
                c1 = Task(Op(f"v_max3_f32 v{X0+12}, v{vTs[0]}, v{vTs[1]}, v{vTs[2]}"), [la[2]], 0, 900)
                c2 = Task(Op(f"v_max_f32 v{X0+12}, v{X0+12}, v{vTs[3]}"), [c1, la[3]], 0, 901)
                c3 = Task(Op(f"v_cmp_nge_f32 vcc, s{sTh}, v{X0+12}"), [c2], 0, 902)
                tasks += [c1, c2, c3]
        mx = []
        for k, m in enumerate((m0r, m1r)):
            b = vS(0, 2*tau + k)
            x = Task(Op(f"v_max3_f32 v{m}, v{b}, v{b+1}, v{b+2}"), [], 8 * k + 11, -20 + k)
            y = Task(Op(f"v_max_f32 v{m}, v{m}, v{b+3}"), [x], 0, -18 + k)
            mx += [x, y]
        tailops = []
        st = red_pair(m0r, m1r, m2r, "v_max_f32")
        fin = [st[0][0], st[1][0], st[2][0], st[3][0], st[4][0], Op(f"v_mul_f32 v{m0r}, s{sC}, v{m0r}")]
        mw = Op(f"ds_write_b32 v{vSx}, v{m0r} offset:{tau*512}", tag=("Mw", 0, tau), cost=8)
        if tau < 2:
            prev = [mx[1], mx[3]]
            for i, o in enumerate(fin):
                t = Task(o, prev, [22, 23, 24, 26, 27, 28][i], -10 + i); mx.append(t); prev = [t]
        else:
            b = vS(1, 4)
            x = Task(Op(f"v_max3_f32 v{m0r}, v{m0r}, v{b}, v{b+1}"), [mx[1]], 27, -10)
            y = Task(Op(f"v_max3_f32 v{m0r}, v{m0r}, v{b+2}, v{b+3}"), [x], 27, -9)
            mx += [x, y]
            b = vS(1, 5)
            tailops = [Op(f"v_max3_f32 v{m1r}, v{m1r}, v{b}, v{b+1}"), Op(f"v_max3_f32 v{m1r}, v{m1r}, v{b+2}, v{b+3}"), Op("s_nop 1"),
                       fin[0], fin[1], fin[2], Op("s_nop 1"), fin[3], fin[4], fin[5], mw]
        G.cap = cfg.pcap
        G.schedule(tasks + mx, 32)
        if tau < 2: G.put_mem(mx[-1].gap + 1, mw)
        for u, (r, a, s) in enumerate(order):
            needs = ([("Kr", 1, a, s)] if tau == 0 and r == 0 else []) + ([("Qr", 0, r, s)] if a == 0 else [])
            A(mfma(v4(vS(a, r)), a4(SETS[a] + 4*s), a4(aQ(r, s)), "0" if s == 0 else v4(vS(a, r))), needs=needs)
            P += G.ops(u)
        P += stamp(cfg, 2 + 2 * tau, 1)
        if tau == 2:
            if cfg.klate: A("s_nop 7")
            else:
                for s in range(8): P.append(k_read(0, s, 2))
        P += G.ops(32)
        P += tailops
    A("s_cbranch_vccnz L_notify0")
    A("L_notified0:")
    P += stamp(cfg, 2)
    A("s_barrier", needs=[("Mw", 0, 2)] + [("Qr", 0, 4 + k, s) for k in range(2) for s in range(8)])
    rd, red = gather_max(2)
    P += rd
    A(f"ds_read_b32 v{vFlag}, v{vFlagA}", tag=("F", 0))
    tasks, _ = softmax_tasks([(a, 4 + k) for k in range(2) for a in range(2)], [0] * 4, {4: 0, 5: 2})
    st = red + [Op(f"v_cmp_ne_u32 vcc, 0, v{vFlag}", needs=[("F", 0)])] + linear(tasks)
    stream += late
    nd = len([x for x in stream if x[1] is not None])
    keep = st[-16:] if cfg.klate else []
    if cfg.klate: st = st[:-16]
    n = len(st) // nd + 1
    for i in range(nd):
        P += flat(take()) + st[i * n:(i + 1) * n]
    if cfg.klate:
        for s in range(8): P.append(k_read(0, s, 2))
    P += keep
    P.append(W(lgkm=0))
    A("s_cbranch_vccnz L_slow")
    P += stamp(cfg, 3)

    Lp = [Op(".p2align 6"), Op("L_loop:")] + body(cfg)
    if cfg.lstamps:
        Lp.append(Op("s_waitcnt lgkmcnt(0)", "salu"))
        Lp.append(Op(f"s_cmp_lg_u32 s{sT}, {cfg.lt + 1}"))
        Lp.append(Op("s_cbranch_scc1 L_nocopy"))
        for i in range(7):
            src = 4 + 2*i if i < 4 else 88 + 2*(i-4) + 8
            Lp.append(Op(f"v_writelane_b32 v{vDbg}, s{src}, {i}"))
        Lp.append(Op("L_nocopy:"))
        Lp.append(Op(f"s_cmp_lt_u32 s{sT}, 6"))
    Lp += [Op("s_cbranch_vccnz L_slow"), Op("L_slow_ret:"), Op("s_cbranch_scc1 L_loop")]
    Lx = [Op(f"s_cmp_eq_u32 s{sT}, 6"), Op("s_cbranch_scc1 L_switch")]
    Sw = [Op("L_switch:"), Op(f"s_mov_b32 s{sK}, s{sV}"), Op(f"s_mov_b32 s{sK+1}, s{sV+1}"), Op(f"v_add_u32 v{vKdma}, 0x10000, v{vVdma}")]
    for q in range(4):
        for n in range(4):
            Sw.append(Op(f"s_sub_u32 s{sKo(q,n)}, s{sVo(4*q + n)}, {32*n}"))
    Sw.append(Op("s_mov_b32 s3, 0x40000000"))
    Sw.append(Op("s_branch L_loop"))

    F = []; A = lambda t, **k: F.append(Op(t, **k))
    F += stamp(cfg, 4) + stamp(cfg, 1, 2)
    vOw, vOr = vA, vB
    def fv_read(beta, dt, half):
        return Op(f"ds_read_b64_tr_b16 {a4(fV(beta, dt) + 2*half, 2)}, v{vVrd[dt]} offset:{(4*beta + 2*half)*1056}", tag=("Vr", 0, beta, dt, half),
                  needs=[("K", 1, beta, 2*half), ("K", 1, beta, 2*half + 1)])
    vr = [fv_read(beta, dt, half) for dt in range(4) for beta in range(4) for half in range(2)]
    lo, lw = l_publish()
    F.append(p_write(0, 0))
    A(f"s_sub_u32 s{sX}, s{sKm0[0]}, s{sVm0[0]}")
    A(f"v_lshrrev_b32 v{t0}, 5, v{vLane}")
    A(f"v_lshl_add_u32 v{t0}, v{t0}, 5, s{sX}")
    for dt in range(4): A(f"v_add_u32 v{vVrd[dt]}, v{vVrd[dt]}, v{t0}")
    for r in range(1, 6):
        F.append(p_write(r, 0))
        F += vr[:2]; vr = vr[2:]
        F += lo[(r - 1) * 4:r * 4] if r < 5 else lo[16:]
    F += lw
    F += vr[:10]; vr = vr[10:]
    A("s_barrier", needs=[("Pw", 0, r) for r in range(6)] + [("Lw", 0, tau) for tau in range(3)])
    F += stamp(cfg, 2, 2)
    order = [(r, dt, beta) for r in range(6) for dt in range(4) for beta in range(4)]
    NG = 96 + 40
    G = Gaps(NG)
    firstuse = {}
    for u, (r, dt, beta) in enumerate(order):
        firstuse.setdefault(("Pr", 0, beta, r), u)
        for h in range(2): firstuse.setdefault(("Vr", 0, beta, dt, h), u)
    prs = sorted([p_read(a4(fP(beta, r)), beta, r, 0) for r in range(6) for beta in range(4)], key=lambda o: firstuse[o.tag])
    lrs = [gather_reads(r, vS(0, 0) + 4*r, SC1 - SC0, "Lr") for r in range(6)]
    F += prs[:4] + lrs[:2] + vr[:4]; vr = vr[4:]
    setup = [f"v_and_b32 v{t0}, 15, v{vLane}", f"v_lshrrev_b32 v{t1}, 4, v{vLane}", f"v_mul_u32_u24 v{t0}, {OST}, v{t0}",
             f"v_lshrrev_b32 v{t2}, 3, v{vLane}", f"v_lshl_add_u32 v{t0}, v{t1}, 3, v{t0}", f"v_mul_u32_u24 v{t2}, {OST}, v{t2}",
             f"v_add_u32 v{vOw}, s{sVm0[0]}, v{t0}", f"v_and_b32 v{t1}, 7, v{vLane}", f"v_lshl_add_u32 v{t2}, v{t1}, 4, v{t2}",
             f"v_add_u32 v{vOr}, s{sVm0[0]}, v{t2}"]
    for x in setup: A(x)
    for r, o in enumerate(lrs): firstuse[o.tag] = 16 * r - 6; o.gap = -3
    rest = sorted(prs[4:] + vr + lrs[2:], key=lambda o: firstuse[o.tag])
    gi = 0
    for o in rest:
        g = max(gi, firstuse[o.tag] - 12, 0)
        while G.cost(g) >= (8 if o.tag[0] == "Vr" else 4): g += 1
        G.put_mem(g, o); gi = g; o.gap = g
    for r in range(1, 6): G.put_first(16 * r - 1, Need([("Pr", 0, beta, r) for beta in range(4)]))
    tasks = []
    for i in range(12): G.put_first(2 + i * 2, Op(f"s_mov_b32 s{sKo(0,0) + i}, {i * 4096}"), 0)
    rc = []
    for r in range(6):
        b = vS(0, 0) + 4 * r; lg = lrs[r].gap + 5; pr = 100 + 160 * r - 60
        x = Task(Op(f"v_add_f32 v{b}, v{b}, v{b+1}", needs=[("Lr", 0, r)]), [], lg, pr)
        y = Task(Op(f"v_add_f32 v{b+2}, v{b+2}, v{b+3}", needs=[("Lr", 0, r)]), [], lg, pr + 1)
        z = Task(Op(f"v_add_f32 v{b}, v{b}, v{b+2}"), [x, y], lg, pr + 2)
        w = Task(Op(f"v_rcp_f32 v{vL[r]}, v{b}"), [z], lg, pr + 3)
        tasks += [x, y, z, w]; rc.append(w)
    lastuse = {}
    for u, (r, dt, beta) in enumerate(order): lastuse[(r, dt)] = u
    memops = []
    for (r, dt), u in sorted(lastuse.items(), key=lambda x: x[1]):
        b = vO(dt, r); e = u + 3
        if e > 95: e = 97
        mu = [Task(Op(f"v_mul_f32 v{b+i}, v{b+i}, v{vL[r]}"), [rc[r]], e, 100 + u * 10 + i) for i in range(4)]
        cv = [Task(Op(f"v_cvt_pk_bf16_f32 v{b+i}, v{b+2*i}, v{b+2*i+1}"), mu[:2*i+2], e, 100 + u * 10 + 14 + i) for i in range(2)]
        cv[1].deps.append(cv[0])
        tasks += mu + cv
        memops.append((r, dt, cv))
    G.cap = cfg.fcap
    G.schedule(tasks, NG - 1, NG)
    allV = [("V", 0, p) for p in range(8 + cfg.drot)]
    lastw = {}
    for r, dt, cv in memops:
        g = cv[1].gap + 1
        G.put_mem(g, Op(f"ds_write_b64 v{vOw}, {v4(vO(dt, r), 2)} offset:{r*16*OST + dt*32}", tag=("Ow", 0, r, dt), needs=allV, cost=12))
        lastw[r] = max(lastw.get(r, 0), g)
    for r in range(6):
        g = lastw[r] + 1
        rb = vPf(0, 0) + 8 * (r % 3)
        for i in range(2):
            G.put_mem(g, Op(f"ds_read_b128 {v4(rb + 4*i)}, v{vOr} offset:{(r*16 + 8*i)*OST}", tag=("Or", 0, r, i)))
            G.put_mem(min(g + 5 + i, G.n - 1), Op(sq(f"buffer_store_dwordx4 {v4(rb + 4*i)}, v{vOut}, {s4(sO)}, s{sKo(0,0) + r*2 + i} offen {cfg.opol}"), needs=[("Or", 0, r, i)]))
    for u, (r, dt, beta) in enumerate(order):
        A(mfma(v4(vO(dt, r)), a4(fV(beta, dt)), a4(fP(beta, r)), v4(vO(dt, r))),
          needs=[("Pr", 0, beta, r), ("Vr", 0, beta, dt, 0), ("Vr", 0, beta, dt, 1)])
        if u in (24, 48): F += stamp(cfg, 3 if u == 24 else 4, 2)
        F += G.ops(u)
    F += stamp(cfg, 5, 2)
    F += G.ops(96)
    A("s_nop 7")
    for g in range(97, G.n): F += G.ops(g)
    if cfg.verbose: print("final costs", [G.cost(g) for g in range(G.n)], file=sys.stderr)
    if cfg.stamps:
        F += stamp(cfg, 5) + stamp(cfg, 6, 2)
        F.append(W(vm=0))
        F += stamp(cfg, 6)
        A("s_memrealtime s[6:7]")
        F.append(W(lgkm=0))
        A(f"s_mov_b32 s{sWS+2}, {256 if cfg.dbg else 0x1000000}"); A(f"s_mov_b32 s{sWS+3}, 0x20000")
        A("v_mov_b32 v0, s34"); A("v_mov_b32 v1, s6")
        if cfg.lstamps:
            for i in range(7): A(f"v_readlane_b32 s{sSt + 2*i}, v{vDbg}, {i}")
            A("s_nop 3")
        for i in range(1, 7):
            A(f"s_sub_u32 s{sX}, s{sSt+2*i}, s{sSt}")
            A(f"v_mov_b32 v{1+i}, s{sX}")
        if cfg.dbg:
            A(f"s_mov_b32 s{sX}, 4096"); A("s_cmp_eq_u32 s2, 0"); A(f"s_cselect_b32 s{sX}, 0, s{sX}")
            A("s_cmp_eq_u32 s2, 200"); A(f"s_cselect_b32 s{sX}, 32, s{sX}")
            A(f"s_lshl_b32 s{sY}, s{sW}, 12"); A(f"s_add_u32 s{sX}, s{sX}, s{sY}")
        else:
            A(f"s_lshl_b32 s{sX}, s2, 7"); A(f"s_lshl_b32 s{sY}, s{sW}, 5"); A(f"s_add_u32 s{sX}, s{sX}, s{sY}")
        A(f"v_mov_b32 v8, s{sX}")
        A(f"v_cmp_eq_u32 vcc, 0, v{vLane}")
        A("s_and_saveexec_b64 s[4:5], vcc")
        A(f"buffer_store_dwordx4 v[0:3], v8, {s4(sWS)}, 0 offen")
        A(f"buffer_store_dwordx4 v[4:7], v8, {s4(sWS)}, 0 offen offset:16")
    A("L_end:")
    A("s_endpgm")

    def notify(sfx):
        return [Op(f"L_notify{sfx}:"), Op(f"v_mov_b32 v{vFlag}, 1"), Op(f"ds_write_b32 v{vFlagA}, v{vFlag}"), W(lgkm=0), Op(f"s_branch L_notified{sfx}")]
    def strip(ops):
        for o in ops: o.needs = []; o.tag = None
        return ops
    S = [Op("L_slow:"), W(lgkm=0), Op("s_barrier"), Op("s_nop 7")]
    for tau in range(3): S += strip(max_local(tau, False, X0))
    S += [W(lgkm=0), Op("s_barrier")]
    S.append(Op(f"v_mov_b32 v{vFlag}, 0"))
    S.append(Op(f"ds_write_b32 v{vFlagA}, v{vFlag}"))
    gb = vPf(0, 0)
    for r in range(6): S += strip([gather_reads(r, gb + 4*r, 0, "Mr")])
    S.append(W(lgkm=0))
    for r in range(6): S.append(Op(f"v_max3_f32 v{gb+4*r}, v{gb+4*r}, v{gb+4*r+1}, v{gb+4*r+2}"))
    for r in range(6): S.append(Op(f"v_max3_f32 v{gb+4*r}, v{gb+4*r}, v{gb+4*r+3}, v{vMc[r]}"))
    for r in range(6): S.append(Op(f"v_sub_f32 v{X0+r}, v{vMc[r]}, v{gb+4*r}"))
    for r in range(6): S.append(Op(f"v_exp_f32 v{X0+r}, v{X0+r}"))
    for r in range(6): S.append(Op(f"v_mov_b32 v{vMc[r]}, v{gb+4*r}"))
    for r in range(6): S.append(Op(f"v_mul_f32 v{vL[r]}, v{vL[r]}, v{X0+r}"))
    for r in range(6):
        for dt in range(4):
            for i in range(4): S.append(Op(f"v_mul_f32 v{vO(dt,r)+i}, v{vO(dt,r)+i}, v{X0+r}"))
    tasks, _ = softmax_tasks([(a, r) for r in range(6) for a in range(2)], [0] * 12, {r: 2 * r for r in range(6)})
    S += linear(tasks)
    S += [Op(f"s_cmp_lt_u32 s{sT}, 6"), Op("s_branch L_slow_ret")]

    trace = [(o, -1) for o in P]
    for t in range(7): trace += [(o, t) for o in Lp]
    trace += [(o, 7) for o in F]
    derive_waits(trace)
    errs = check_hazards(P + Lp + Lp + Lx + Sw + Lp + Lx + F) + check_hazards(Lp + S + Lp) + check_hazards(Lp + S + Lx + F) + check_hazards(P + S + Lp)
    for e in sorted(set(errs)): print("HAZARD", e, file=sys.stderr)
    assert not errs
    hdr = [l for l in open("standalone__gqa_softmax__near_ridge.s.ref").read().splitlines() if l.startswith(";") and "@launch grid" not in l] if cfg.refhdr else []
    L = header(256, 256, LDS_TOTAL, hdr)
    L += emit(P) + emit(Lp) + emit(Lx) + emit(F) + emit(Sw) + ["L_code_end:"] + emit(notify("")) + emit(notify("0")) + emit(S)
    L += footer(512, 256)
    return "\n".join(L) + "\n"

if __name__ == "__main__":
    cfg = Cfg()
    out = sys.argv[1]
    for a in sys.argv[2:]:
        k, v = a.split("=", 1)
        if not isinstance(getattr(Cfg, k), str): v = eval(v)
        setattr(cfg, k, v)
    open(out, "w").write(build(cfg))
```

```python
import sys, math, struct
from fw import *
from asmlib import header, footer, NAME

def f2u(x): return struct.unpack("<I", struct.pack("<f", x))[0]

class Cfg:
    kpol = ""; vpol = ""; qpol = "nt"; opol = "nt"
    stamps = False; dbg = False; lstamps = None; lt = 3; spin_at = -1; spin_us = 0; rt = 0; smode = 0
    thresh = 65536.0
    refhdr = False
    cpf = 1
    verbose = 0
    mask = 1
    ga = 184
    gb = 74
    pwg = [0, 12, 24, 36, 48, 60]
    dpos = [b + 4 * i for b in (16, 50, 112, 146) for i in range(8)]
    drot = 0
    rd0 = [3, 4, 4, 31]
    rdspan = [8, 38, 38, 8]
    ovf0 = 11
    fcap = 12
    mask2 = 0
    klate = 1
    nofma = 0
    fbar = 19
    fpw = [0, 3, 6, 9, 12, 15]
    npre = 12
    pgs = [1, 5, 9, 13, 18, 22, 26, 30]
    pcap = 12

KW = 16896; KB = 0
VB = 4 * KW; VW = 16384
PB = VB + 4 * VW
SC0 = PB + 24576
SC1 = SC0 + 2048
LDS_TOTAL = SC1 + 2048
FLAG = 1024
KIMM = [0, 1056, 2112, 3168]
def q_quarter_base(tau, q):
    if tau == 0: return PB + q * 4224
    return VB + q * VW + VW - (3 - tau) * 4224
OST = 144
PL = 4224

def vO(dt, r): return (r * 4 + dt) * 4
def vS(a, r): return 96 + (r * 2 + a) * 4
def vPk(r): return 144 + 4 * r
def vPf(slot, b): return 168 + slot * 8 + 4 * b
vMc = list(range(192, 198)); vL = list(range(198, 204)); vTs = list(range(204, 210))
vKrd, vPrd, vPwr, vKdma, vVdma, vSx, vSr, vFlagA, vFlag, vOut, vLane, vA, vB = range(210, 223)
vVrd = [224, 225, 226, 227]
vDbg = 223
T0 = 228; NT = 12
X0 = 240
def aQ(r, s): return (r * 8 + s) * 4
SETS = [192, 224]
sQ, sK, sV, sO = 12, 16, 20, 24
sW, sG, sU, sT, sC, sTh = 28, 29, 30, 31, 32, 33
sKm0 = [36, 37, 38, 39]; sVm0 = [40, 41, 42, 43]
def sKo(q, n): return 44 + q * 4 + n
def sVo(p): return 60 + p
sX, sY, sZ = 76, 77, 78
sKs, sVs, sKd, sVd, sM = 79, 80, 81, 82, 83
BIAS = 4096
sMq = 33
sWS = 84; sSt = 88

def v4(b, n=4): return f"v[{b}:{b+n-1}]"
def a4(b, n=4): return f"a[{b}:{b+n-1}]"
def s4(b): return f"s[{b}:{b+3}]"
def sq(t): return " ".join(t.split())
def mfma(d, a, b, c): return f"v_mfma_f32_16x16x32_bf16 {d}, {a}, {b}, {c}"

def k_read(a, s, toff):
    return Op(f"ds_read_b128 {a4(SETS[a] + 4*s)}, v{vKrd} offset:{a*8448 + s*64}", tag=("Kr", toff, a, s),
              needs=[("K", toff, 2*a + u, j) for u in range(2) for j in range(4)])
def k_dma(cfg, q, n, toff, needs=()):
    return Op(sq(f"buffer_load_dwordx4 v{vKdma}, {s4(sK)}, s{sKo(q,n)} offen offset:{KIMM[n]} {cfg.kpol} lds"), tag=("K", toff, q, n), needs=needs)
def v_dma(cfg, p, toff, needs=()):
    return Op(sq(f"buffer_load_dwordx4 v{vVdma}, {s4(sV)}, s{sVo(p)} offen offset:{(p%4)*1024} {cfg.vpol} lds"), tag=("V", toff, p), needs=needs)
def v_read(dstbase, beta, dt, half, toff):
    p = 4 * beta + 2 * half
    return Op(f"ds_read_b64_tr_b16 {a4(dstbase + 2*half, 2)}, v{vVrd[dt]} offset:{p*1024}", tag=("Vr", toff, beta, dt, half),
              needs=[("V", toff, p), ("V", toff, p + 1)])
def p_read(dst, beta, r, toff):
    return Op(f"ds_read_b128 {dst}, v{vPrd} offset:{(beta*6 + r)*1024}", tag=("Pr", toff, beta, r))
def p_write(r, toff):
    return Op(f"ds_write_b128 v{vPwr}, {v4(vPk(r))} offset:{r*1024}", tag=("Pw", toff, r))

NOFMA = 'nofma=1' in sys.argv
class Task:
    def __init__(self, op, deps=(), earliest=0, prio=0):
        self.op = op; self.deps = list(deps); self.earliest = earliest; self.prio = prio; self.gap = None

def softmax_tasks(quads, earliest, first_quad_of):
    tasks = []; fm = []; ex = []; user = []
    last_add = {}
    e = 0
    for qi, (a, r) in enumerate(quads):
        for i in range(4):
            t = T0 + e % NT
            deps = user[e - NT] if e >= NT else []
            if NOFMA and len(quads) == 12 and earliest[0]:
                x = Task(Op(f"v_exp_f32 v{t}, v{vS(a,r)+i}"), deps, earliest[qi], e * 4 + 5)
                ex.append(x); user.append([]); tasks.append(x)
            else:
                f = Task(Op(f"v_fma_f32 v{t}, v{vS(a,r)+i}, s{sC}, -v{vMc[r]}"), deps, earliest[qi], e * 4)
                x = Task(Op(f"v_exp_f32 v{t}, v{t}"), [f], 0, e * 4 + 5)
                fm.append(f); ex.append(x); user.append([])
                tasks += [f, x]
            first = first_quad_of[r] == qi
            if first and i == 0: pass
            else:
                if first and i == 1:
                    ad = Task(Op(f"v_add_f32 v{vTs[r]}, v{T0 + (e-1) % NT}, v{t}"), [ex[e - 1], x], 0, e * 4 + 10)
                    user[e - 1].append(ad)
                    ad.first_ts = r
                else:
                    ad = Task(Op(f"v_add_f32 v{vTs[r]}, v{vTs[r]}, v{t}"), [x, last_add[r]], 0, e * 4 + 10)
                last_add[r] = ad; user[e].append(ad); tasks.append(ad)
            if i % 2 == 1:
                c = Task(Op(f"v_cvt_pk_bf16_f32 v{vPk(r) + 2*a + i//2}, v{T0 + (e-1) % NT}, v{t}"), [ex[e - 1], x], 0, e * 4 + 11)
                c.pk = (r, 2 * a + i // 2)
                user[e - 1].append(c); user[e].append(c); tasks.append(c)
            e += 1
    return tasks, last_add

def linear(tasks):
    return [t.op for t in sorted(tasks, key=lambda t: t.prio)]

class Gaps:
    def __init__(self, n, cap=8):
        self.n = n; self.cap = cap
        self.first = [None] * n; self.mem = [[] for _ in range(n)]; self.val = [[] for _ in range(n)]; self.tail = [[] for _ in range(n)]
    def cost(self, g): return sum(o.cost for o in self.mem[g] + self.val[g] + self.tail[g])
    def put_first(self, g, op, lo=None):
        lo = g if lo is None else lo
        for x in range(g, lo - 1, -1):
            if self.first[x] is None:
                self.first[x] = op; return x
            if op.kind == "pseudo" and self.first[x].kind == "pseudo":
                self.first[x].needs += op.needs; return x
        raise ValueError(f"no free first slot near {g} for {op.text}")
    def put_mem(self, g, op): self.mem[g].append(op)
    def schedule(self, tasks, deadline, ovf0=0):
        todo = sorted(tasks, key=lambda t: t.prio)
        for g in range(self.n):
            room = self.cap - self.cost(g)
            if g < ovf0: pass
            elif g < deadline:
                rem = sum(t.op.cost for t in todo)
                capleft = sum(max(0, self.cap - self.cost(x)) for x in range(g, deadline))
                if rem > capleft - 12: room += 4
                if rem > capleft + 2 * (deadline - g): room += 4
            else: room = 1000
            while True:
                ready = [t for t in todo if t.earliest <= g and all(d.gap is not None and (d.gap < g or g >= deadline) for d in t.deps) and t.op.cost <= room]
                if not ready: break
                big = [t for t in ready if t.op.cost == 8]
                t = big[0] if big and big[0].prio <= ready[0].prio + 40 else ready[0]
                t.gap = g; self.val[g].append(t.op); room -= t.op.cost; todo.remove(t)
        assert not todo, [t.op.text for t in todo]
    def ops(self, g):
        return ([self.first[g]] if self.first[g] else []) + self.mem[g] + self.val[g] + self.tail[g]

def red_pair(x0, x1, t, op):
    return [[Op(f"v_permlane32_swap_b32 v{x0}, v{x1}")], [Op(f"{op} v{x0}, v{x0}, v{x1}")], [Op(f"v_mov_b32 v{t}, v{x0}")],
            [Op(f"v_permlane16_swap_b32 v{x0}, v{t}")], [Op(f"{op} v{x0}, v{x0}, v{t}")]]

def max_local(tau, first, base):
    o = []
    m = [base, base + 1]
    for i in range(4):
        for k in range(2):
            r = 2 * tau + k; b = vS(0, r)
            if i == 0: o.append(Op(f"v_max3_f32 v{m[k]}, v{b}, v{b+1}, v{b+2}"))
            elif i < 3: o.append(Op(f"v_max3_f32 v{m[k]}, v{m[k]}, v{b+2*i+1}, v{b+2*i+2}"))
            else: o.append(Op(f"v_max_f32 v{m[k]}, v{m[k]}, v{b+7}"))
    st = red_pair(m[0], m[1], base + 2, "v_max_f32")
    o += [Op("s_nop 1")] + st[0] + st[1] + st[2] + [Op("s_nop 1")] + st[3] + st[4]
    o.append(Op(f"v_mul_f32 v{m[0]}, s{sC}, v{m[0]}"))
    o.append(Op(f"ds_write_b32 v{vSx}, v{m[0]} offset:{tau*512}", tag=("Mw", 0, tau), cost=8))
    return o
def gather_reads(r, dst, off, tag):
    return Op(f"ds_read_b128 {v4(dst)}, v{vSr} offset:{off + r*256}", tag=(tag, 0, r))

def stamp(cfg, i, mode=0):
    if not cfg.stamps or (i and mode != cfg.smode): return []
    o = [Op(f"{'s_memrealtime' if cfg.rt else 's_memtime'} s[{sSt + 2*i}:{sSt + 2*i + 1}]")]
    if cfg.spin_at == i:
        o += [Op("s_waitcnt lgkmcnt(0)", "salu"), Op(f"L_spin{i}_{id(o)}:"), Op("s_sleep 2"), Op("s_memrealtime s[86:87]"), Op("s_waitcnt lgkmcnt(0)", "salu"),
              Op("s_sub_u32 s86, s86, s34"), Op(f"s_cmp_lt_u32 s86, {int(cfg.spin_us*100)}"), Op(f"s_cbranch_scc1 L_spin{i}_{id(o)}")]
    return o

def fV(beta, dt): return (dt * 4 + beta) * 4
def fP(beta, r): return 64 + (r * 4 + beta) * 4
vPlw, vPlr = vA, vB
def pl_write(r): return Op(f"ds_write_b128 v{vPlw}, {v4(vPk(r))} offset:{r*1024}", tag=("Plw", 0, r))
def pl_read(beta, r, toff): return Op(f"ds_read_b128 {a4(fP(beta, r))}, v{vPlr} offset:{beta*KW + r*1024}", tag=("Plr", toff, beta, r))
def l_publish():
    o = []
    for r in range(6): o.append(Op(f"v_add_f32 v{X0 + r}, v{vL[r]}, v{vTs[r]}"))
    sts = [red_pair(X0 + 2*tau, X0 + 2*tau + 1, X0 + 6 + tau, "v_add_f32") for tau in range(3)]
    for i in range(5):
        for tau in range(3): o += sts[tau][i]
    w = [Op(f"ds_write_b32 v{vSx}, v{X0 + 2*tau} offset:{SC1 - SC0 + tau*512}", tag=("Lw", 0, tau), cost=8) for tau in range(3)]
    return o, w

def dma_plan(cfg):
    seq = [(c, i) for c in (2, 3, 0, 1) for i in range(8)]
    plan = []
    for k in range(32):
        j = k + cfg.drot
        c, i = seq[j % 32]
        wrap = 1 if (c in (2, 3) and j < 32) else 0
        plan.append((c, i, wrap))
    return plan

def body(cfg):
    sfx = ""
    G = Gaps(192)
    MF = []
    for a in range(2):
        for r in range(6):
            for s in range(8):
                MF.append(Op(mfma(v4(vS(a, r)), a4(SETS[a] + 4*s), a4(aQ(r, s)), "0" if s == 0 else v4(vS(a, r))),
                             needs=[("Kr", 1, a, s)] if r == 0 else []))
    for hb in range(2):
        for r in range(6):
            k = 6 * hb + r
            for dt in range(4):
                for b in range(2):
                    beta = 2 * hb + b
                    n = [("Pr", 0, beta, r)] if dt == 0 else []
                    if r == 0: n += [("Vr", 0, beta, dt, 0), ("Vr", 0, beta, dt, 1)]
                    MF.append(Op(mfma(v4(vO(dt, r)), a4(SETS[hb] + 4*(2*dt + b)), v4(vPf(k % 3, b)), v4(vO(dt, r))), needs=n))
    GA = cfg.ga; GB = cfg.gb
    pwg = cfg.pwg
    for r in range(6): G.put_mem(pwg[r], p_write(r, 0))
    G.put_mem(GB, Op("s_barrier", needs=[("Pw", 0, r) for r in range(6)]))
    G.put_first(GB, Need([("Pw", 0, r) for r in range(6)]))
    G.put_mem(GA, Op("s_barrier", needs=[("Pr", 0, 2, 5), ("Pr", 0, 3, 5)]))
    G.put_mem(GA + 1, Op(f"ds_read_b32 v{vFlag}, v{vFlagA}", tag=("F", 0)))
    def free_at(g, lim=0):
        while G.cost(g) > lim: g += 1
        return g
    def chunk_dma(c, i, wrap):
        if c in (0, 3):
            a = 1 if c == 0 else 0; toff = (1 if c == 0 else 2) - wrap; u, j = 2*a + i // 4, i % 4
            rd = [("Kr", toff, a, s) for s in range(8)]
            return (sKm0[u] if j == 0 else None), k_dma(cfg, u, j, toff + 1, needs=rd)
        hb = c - 1; p = 8 * hb + i; toff = -wrap
        rd = [("Vr", toff, p // 4, dt, (p % 4) // 2) for dt in range(4)]
        return (sVm0[p // 4] if p % 4 == 0 else None), v_dma(cfg, p, toff + 1, needs=rd)
    lastd = {}
    rd0 = list(cfg.rd0); rdspan = list(cfg.rdspan)
    prevg = -1
    for k, (c, i, wrap) in enumerate(dma_plan(cfg)):
        g = free_at(max(cfg.dpos[k], prevg + 2))
        m, o = chunk_dma(c, i, wrap)
        if k == 0 and m is None: m = sVm0[(8 + i) // 4]
        if m is not None: G.put_first(g - 1, Op(f"s_mov_b32 m0, s{m}"), prevg + 1)
        G.put_mem(g, o); prevg = g
        if i == 7: lastd[c] = g
    for k in range(12):
        hb, r = divmod(k, 6)
        g = 96 + 8 * (k - 2)
        for b in range(2):
            g = free_at(g); G.put_mem(g, p_read(v4(vPf(k % 3, b)), 2*hb + b, r, 0)); g += 1
        assert g <= 96 + 8 * k - 6, (k, g)
        G.put_first(96 + 8 * k - 1, Need([("Pr", 0, 2*hb + b, r) for b in range(2)]), 96 + 8 * k - 4)
    for c in range(4):
        if c in (0, 3):
            a = 1 if c == 0 else 0; toff = 1 if c == 0 else 2
            rds = [[k_read(a, 2*q, toff), k_read(a, 2*q + 1, toff)] for q in range(4)]
        else:
            hb = c - 1
            rds = [[v_read(SETS[hb] + 4*(2*dt + j // 2), 2*hb + j // 2, dt, j % 2, 0) for dt in range(4)] for j in range(4)]
        for j in range(4):
            g = 48 * c + rd0[c] + (j * rdspan[c]) // 4
            for x, o in enumerate(rds[j]):
                dbl = False
                g = free_at(g, 4 if dbl else 0)
                if x == 0: G.put_first(g, Need(list(o.needs)), g - 3)
                G.put_mem(g, o)
                if not dbl: g += 1
                elif G.cost(g) >= 8: g += 2
            assert g <= 48 * c + 44, (c, j, g)
        G.put_first(48 * c + 47, Need([o.tag for rr in rds for o in rr]), 48 * c + 45)
    quads = [(a, r) for a in range(2) for r in range(6)]
    tasks, last_add = softmax_tasks(quads, [8 * i + 11 for i in range(12)], {r: r for r in range(6)})
    ladd = [Task(Op(f"v_add_f32 v{vL[r]}, v{vL[r]}, v{vTs[r]}"), [], 0, -100 + r) for r in range(6)]
    for t in tasks:
        if hasattr(t, "first_ts"): t.deps.append(ladd[t.first_ts])
        if hasattr(t, "pk"): t.earliest = max(t.earliest, pwg[t.pk[0]] + 1)
    tasks += ladd
    c1 = Task(Op(f"v_max3_f32 v{X0+12}, v{vTs[0]}, v{vTs[1]}, v{vTs[2]}"), [last_add[r] for r in range(3)], 0, 150)
    c2 = Task(Op(f"v_max3_f32 v{X0+12}, v{X0+12}, v{vTs[3]}, v{vTs[4]}"), [c1, last_add[3], last_add[4]], 0, 190)
    c3 = Task(Op(f"v_max_f32 v{X0+12}, v{X0+12}, v{vTs[5]}"), [c2, last_add[5]], 0, 1000)
    c4 = Task(Op(f"v_cmp_nge_f32 vcc, s{sTh}, v{X0+12}"), [c3], 0, 1001)
    tasks += [c1, c2, c3, c4]
    for c, v in ((0, vKdma), (2, vVdma)):
        assert lastd[c] < 191
        G.val[lastd[c] + 1].append(Op(f"v_add_u32 v{v}, s3, v{v}"))
    G.schedule(tasks, GA - 3, cfg.ovf0)
    gbr = c4.gap + 2
    while G.first[gbr] is not None: gbr += 1
    assert gbr <= GA, (c4.gap, gbr)
    G.first[gbr] = Op(f"s_cbranch_vccnz L_notify{sfx}")
    G.mem[gbr].insert(0, Op(f"L_notified{sfx}:"))
    G.put_first(149, Op(f"s_add_u32 s{sT}, s{sT}, 1"), 146)
    G.put_first(156, Op(f"s_cmp_lt_u32 s{sT}, 6"), 152)
    G.put_first(189, Need([("F", 0)]))
    G.val[189].append(Op(f"v_cmp_ne_u32 vcc, 0, v{vFlag}", needs=[("F", 0)]))
    costs = [G.cost(g) for g in range(192)]
    if cfg.verbose: print("loop est cycles", sum(max(16, 8 + c) for c in costs), costs, file=sys.stderr)
    L = []
    for g in range(192):
        L.append(MF[g])
        if cfg.lstamps and g in cfg.lstamps:
            i = cfg.lstamps.index(g)
            L.append(Op(f"s_memtime s[{4 + 2*i if i < 4 else 88 + 2*(i-4) + 8}:{5 + 2*i if i < 4 else 89 + 2*(i-4) + 8}]"))
        L += G.ops(g)
    return L

def build(cfg):
    P = []; A = lambda t, **k: P.append(Op(t, **k))
    sQo = [79, 80, 81, 82]
    vQd = X0 + 15
    t0, t1, t2, t3 = T0, T0 + 1, T0 + 2, T0 + 3
    A("s_cmp_ge_u32 s2, 256"); A("s_cbranch_scc1 L_end")
    if cfg.stamps:
        A("s_memrealtime s[34:35]")
        P += stamp(cfg, 0)
        A(f"s_load_dwordx2 s[{sWS}:{sWS+1}], s[0:1], {32 if cfg.dbg else 40}")
    A("s_load_dwordx8 s[4:11], s[0:1], 0")
    if cfg.cpf:
        A(f"s_getpc_b64 s[{sX}:{sX+1}]")
        A("L_pc:")
        A(f"v_lshlrev_b32 v{X0}, 7, v0")
        A(f"v_min_u32 v{X0}, L_code_end - L_pc - 4, v{X0}")
        A(f"v_mov_b32 v{X0+1}, s{sX+1}")
        A(f"v_add_co_u32 v{X0}, vcc, s{sX}, v{X0}")
        A(f"v_and_b32 v{vLane}, 63, v0")
        A(f"v_lshrrev_b32 v{vA}, 6, v0")
        A(f"v_addc_co_u32 v{X0+1}, vcc, 0, v{X0+1}, vcc")
        A(f"global_load_dword v{vDbg}, v[{X0}:{X0+1}], off")
    else:
        A(f"v_and_b32 v{vLane}, 63, v0")
        A(f"v_lshrrev_b32 v{vA}, 6, v0")
        A("s_nop 0")
    A(f"v_readfirstlane_b32 s{sW}, v{vA}")
    A(f"s_and_b32 s{sU}, s2, 7"); A(f"s_lshl_b32 s{sU}, s{sU}, 5"); A(f"s_lshr_b32 s{sX}, s2, 3"); A(f"s_add_u32 s{sU}, s{sU}, s{sX}")
    A(f"v_lshrrev_b32 v{t1}, 5, v{vLane}")
    A(f"v_xor_b32 v{t1}, v{t1}, v{vLane}")
    A(f"v_lshlrev_b32 v{vKdma}, 4, v{t1}")
    A(f"s_mul_i32 s{sY}, s{sU}, 49152")
    A(f"s_lshl_b32 s{sX}, s{sW}, 12")
    A(f"s_add_u32 s{sX}, s{sY}, s{sX}")
    A(f"v_add_u32 v{vQd}, s{sX}, v{vKdma}")
    A(f"s_movk_i32 s{sQo[0]}, 96")
    A(f"s_mul_i32 s{sX}, s{sW}, 4224")
    A(f"s_add_u32 m0, s{sX}, {PB}")
    A(f"s_mov_b32 s{sQ+2}, {12582912 + 96}"); A(f"s_mov_b32 s{sQ+3}, 0x20000")
    A(f"s_lshl_b32 s{sKm0[0]}, s{sX}, 2")
    A(f"s_lshr_b32 s{sZ}, s{sU}, 2"); A(f"s_lshl_b32 s{sZ}, s{sZ}, 19")
    P.append(W(lgkm=0))
    A(f"s_sub_u32 s{sQ}, s4, 96"); A(f"s_subb_u32 s{sQ+1}, s5, 0")
    P += stamp(cfg, 1, 3)
    qso = [f"s{sQo[0]}", "64", "32", "0"]
    def q_dma(tau):
        return [Op(sq(f"buffer_load_dwordx4 v{vQd}, {s4(sQ)}, {qso[n]} offen offset:{KIMM[n]} {cfg.qpol} lds"), tag=("Q", 0, tau, n)) for n in range(4)]
    q0 = q_dma(0)
    P.append(q0[0])
    A(f"s_and_b32 s{sM}, s{sU}, {1 if cfg.mask else 0}"); A(f"s_mul_i32 s{sM}, s{sM}, 0xa000")
    if cfg.mask2:
        A(f"s_bfe_u32 s{sX}, s{sU}, 0x10001"); A(f"s_mul_i32 s{sX}, s{sX}, {cfg.mask2}"); A(f"s_xor_b32 s{sM}, s{sM}, s{sX}")
    A(f"s_lshl_b32 s{sX}, s{sW}, 14")
    A(f"s_add_u32 s{sVm0[0]}, s{sX}, {VB}")
    P.append(q0[1])
    A(f"s_and_b32 s{sT}, s{sM}, 0xc000"); A(f"s_xor_b32 s{sX}, s{sX}, s{sT}")
    A(f"s_add_u32 s{sX}, s{sX}, s{sZ}")
    A(f"v_add_u32 v{vKdma}, s{sX}, v{vKdma}")
    P.append(q0[2])
    A(f"s_sub_u32 s{sK}, s6, {BIAS}"); A(f"s_subb_u32 s{sK+1}, s7, 0")
    A(f"s_add_u32 s{sK+2}, s{sZ}, {524288 + BIAS}"); A(f"s_mov_b32 s{sK+3}, 0x20000")
    P.append(q0[3])
    A(f"s_and_b32 s{sT}, s{sM}, 0x3000")
    for u in range(2):
        if u: A(f"s_add_u32 s{sKm0[u]}, s{sKm0[0]}, {u*4224}"); A(f"s_xor_b32 s{sT}, s{sT}, 0x1000")
        A(f"s_mov_b32 m0, s{sKm0[u]}")
        for j in range(4):
            A(f"s_add_u32 s{sKo(u,j)}, s{sT}, {BIAS - 32*j}")
            P.append(k_dma(cfg, u, j, 1))
    P += stamp(cfg, 2, 3)
    for u in (2, 3):
        A(f"s_xor_b32 s{sT}, s{sT}, {0x3000 if u == 2 else 0x1000}")
        A(f"s_add_u32 s{sKm0[u]}, s{sKm0[0]}, {u*4224}")
        for j in range(4): A(f"s_add_u32 s{sKo(u,j)}, s{sT}, {BIAS - 32*j}")
    A(f"s_and_b32 s{sQo[1]}, s{sW}, 1"); A(f"s_lshl_b32 s{sQo[1]}, s{sQo[1]}, 7"); A(f"s_sub_u32 s{sQo[1]}, s{sVm0[0]}, s{sQo[1]}")
    A(f"v_add_u32 v{vQd}, 0x4000, v{vQd}")
    def k_half(a, toff, needs=()):
        return [(sKm0[2*a + u] if j == 0 else None, k_dma(cfg, 2*a + u, j, toff, needs=needs)) for u in range(2) for j in range(4)]
    def m0op(m): return Op(m if isinstance(m, str) else f"s_mov_b32 m0, s{m}")
    def flat(dm):
        o = []
        for m, d in dm:
            if d is None: o.append(m); continue
            if m is not None: o += [m0op(m), Op("s_nop 0")]
            o.append(d)
        return o
    def qm0(tau): return f"s_add_u32 m0, s{sQo[1]}, {VW - (3 - tau) * 4224}"
    plan = dma_plan(cfg)
    krd = lambda a: [("Kr", 1, a, s) for s in range(8)]
    stream = k_half(1, 1) + [(Op(f"v_add_u32 v{vKdma}, 0x10000, v{vKdma}"), None)]
    stream += [(qm0(1) if n == 0 else None, o) for n, o in enumerate(q_dma(1))] + [(Op(f"v_add_u32 v{vQd}, 0x4000, v{vQd}"), None)]
    stream += [(qm0(2) if n == 0 else None, o) for n, o in enumerate(q_dma(2))]
    stream += k_half(0, 2, krd(0)) + k_half(1, 2, krd(1)) + [(Op(f"v_add_u32 v{vKdma}, 0x10000, v{vKdma}"), None)]
    stream += [(sVm0[p // 4] if p % 4 == 0 else None, v_dma(cfg, p, 1)) for p in range(7)]
    late = [(sVm0[p // 4] if p % 4 == 0 or p == 7 else None, v_dma(cfg, p, 1)) for p in range(7, 8 + cfg.drot)]
    def take():
        x = [stream.pop(0)]
        while stream and stream[0][1] is None: x.append(stream.pop(0))
        return x
    U = []; B = lambda t: U.append(Op(t))
    B(f"v_lshrrev_b32 v{t0}, 3, v{vLane}")
    B(f"v_lshlrev_b32 v{t0}, 9, v{t0}")
    B(f"v_lshrrev_b32 v{t1}, 4, v{vLane}")
    B(f"v_and_b32 v{t2}, 7, v{vLane}")
    B(f"s_lshl_b32 s{sG}, s{sW}, 7")
    B(f"s_add_u32 s{sY}, s{sY}, s{sG}")
    B(f"v_lshl_add_u32 v{vOut}, v{t2}, 4, v{t0}")
    B(f"v_add_u32 v{vOut}, s{sY}, v{vOut}")
    B(f"v_lshlrev_b32 v{t1}, 1, v{t1}")
    B(f"v_xor_b32 v{t3}, v{t2}, v{t1}")
    B(f"v_lshl_add_u32 v{vVdma}, v{t3}, 4, v{t0}")
    B(f"s_add_u32 s{sX}, s{sG}, s{sZ}")
    B(f"v_add_u32 v{vVdma}, s{sX}, v{vVdma}")
    B(f"v_bfe_u32 v{t0}, v{vLane}, 1, 3")
    B(f"v_mul_u32_u24 v{t0}, 1056, v{t0}")
    B(f"v_and_b32 v{t2}, 1, v{vLane}")
    B(f"v_lshl_add_u32 v{t0}, v{t2}, 9, v{t0}")
    B(f"v_lshrrev_b32 v{t1}, 4, v{vLane}")
    B(f"v_xor_b32 v{t2}, v{t2}, v{t1}")
    B(f"v_lshl_add_u32 v{t0}, v{t2}, 4, v{t0}")
    B(f"v_bfe_u32 v{t2}, v{vLane}, 3, 1")
    B(f"v_mul_u32_u24 v{t2}, {VW - 128 - 4224}, v{t2}")
    B(f"v_add_u32 v{vA}, {VB}, v{t0}")
    B(f"v_add_u32 v{vA}, v{vA}, v{t2}")
    B(f"v_add_u32 v{vB}, {PB}, v{t0}")
    B(f"v_add_u32 v{vKrd}, s{sKm0[0]}, v{t0}")
    B(f"v_and_b32 v{t0}, 15, v{vLane}")
    B(f"v_lshlrev_b32 v{t0}, 4, v{t0}")
    B(f"v_add_u32 v{vSr}, {SC0}, v{t0}")
    B(f"v_lshrrev_b32 v{t2}, 5, v{vLane}")
    B(f"v_lshl_add_u32 v{t2}, v{t2}, 8, v{vSr}")
    B(f"s_lshl_b32 s{sX}, s{sW}, 2")
    B(f"v_add_u32 v{vSx}, s{sX}, v{t2}")
    B(f"v_mov_b32 v{vFlagA}, {FLAG}")
    B(f"v_mov_b32 v{vFlag}, 0")
    B(f"ds_write_b32 v{vFlagA}, v{vFlag}")
    B(f"s_mov_b32 s{sC}, {hex(f2u(math.log2(math.e) / 16.0))}")
    B(f"s_mov_b32 s{sTh}, {hex(f2u(cfg.thresh))}")
    B(f"s_mov_b32 s{sT}, 0")
    B("s_mov_b32 s3, 0x10000")
    for b in range(1, 4): B(f"s_add_u32 s{sVm0[b]}, s{sVm0[0]}, {b*4096}")
    B(f"s_sub_u32 s{sV}, s8, {BIAS}"); B(f"s_subb_u32 s{sV+1}, s9, 0"); B(f"s_mov_b32 s{sV+2}, s{sK+2}"); B(f"s_mov_b32 s{sV+3}, 0x20000")
    if cfg.mask2:
        for p in range(16):
            B(f"s_xor_b32 s{sX}, s{sM}, {p*4096}"); B(f"s_add_u32 s{sVo(p)}, s{sX}, {BIAS - (p%4)*1024}")
    else:
        for hi in range(4):
            base = (hi >> 1) * 8 + (hi & 1) * 2
            B(f"s_xor_b32 s{sX}, s{sM}, {base*4096}")
            for lo in (0, 1, 4, 5):
                p = base + lo
                B(f"s_add_u32 s{sVo(p)}, s{sX}, {lo*4096 + BIAS - (p%4)*1024}")
    B(f"s_mov_b32 s{sO}, s10"); B(f"s_mov_b32 s{sO+1}, s11"); B(f"s_mov_b32 s{sO+2}, 12582912"); B(f"s_mov_b32 s{sO+3}, 0x20000")
    B(f"v_lshrrev_b32 v{t0}, 2, v{vLane}")
    B(f"v_lshlrev_b32 v{t0}, 7, v{t0}")
    B(f"v_bfe_u32 v{t2}, v{vLane}, 3, 2")
    B(f"v_lshl_add_u32 v{t0}, v{t2}, 5, v{t0}")
    B(f"v_and_b32 v{t2}, 3, v{vLane}")
    B(f"v_lshl_add_u32 v{t0}, v{t2}, 3, v{t0}")
    B(f"v_add_u32 v{vVrd[0]}, s{sVm0[0]}, v{t0}")
    for dt in range(1, 4): B(f"v_xor_b32 v{vVrd[dt]}, {dt*32}, v{vVrd[0]}")
    B(f"v_lshlrev_b32 v{t0}, 4, v{vLane}")
    B(f"v_add_u32 v{vPrd}, {PB}, v{t0}")
    B(f"s_mul_i32 s{sX}, s{sW}, 6144")
    B(f"v_add_u32 v{vPwr}, s{sX}, v{vPrd}")
    for i in range(96): B(f"v_mov_b32 v{i}, 0")
    for r in range(6): B(f"v_mov_b32 v{vL[r]}, 0")
    nz = len(U) // max(cfg.npre, 1) + 1
    k = 0
    for i in range(cfg.npre):
        e = min(len(U), (i + 1) * nz)
        while e < len(U) and U[e].text.startswith("s_subb"): e += 1
        P += U[k:e]; k = e
        P += flat(take())
    P += U[k:]
    P.append(W(lgkm=0))
    P += stamp(cfg, 4, 3)
    def q_read(r, s):
        tau, a = divmod(r, 2)
        base, off = (vB, a * 8448) if tau == 0 else (vA, 2 * a * VW + VW - (3 - tau) * 4224)
        return Op(f"ds_read_b128 {a4(aQ(r,s))}, v{base} offset:{off + s*64}", tag=("Qr", 0, r, s))
    def gather_max(tau):
        rd = [gather_reads(2*tau + k, X0 + 4 + 4*k, 0, "Mr") for k in range(2)]
        red = []
        for i in range(2):
            for k in range(2):
                b = X0 + 4 + 4 * k; r = 2 * tau + k
                if i == 0: red.append(Op(f"v_max3_f32 v{b}, v{b}, v{b+1}, v{b+2}", needs=[("Mr", 0, r)]))
                else: red.append(Op(f"v_max_f32 v{vMc[r]}, v{b}, v{b+3}"))
        return rd, red
    m0r, m1r, m2r = X0, X0 + 1, X0 + 2
    for tau in range(3):
        A("s_barrier", needs=[("Q", 0, tau, n) for n in range(4)] + ([("Mw", 0, tau - 1)] + [("Qr", 0, 2*tau - 2 + k, s) for k in range(2) for s in range(8)] if tau else []))
        if tau == 0: P += stamp(cfg, 1)
        P += stamp(cfg, 1 + 2 * tau, 1)
        if tau < 2: P += stamp(cfg, 5 + tau, 3)
        G = Gaps(33)
        order = [(2*tau + k, a, s) for a in range(2) for k in range(2) for s in range(8)]
        rds = []
        for u, (r, a, s) in enumerate(order):
            if tau == 0 and r == 0: rds.append((u, k_read(a, s, 1)))
            if a == 0: rds.append((u, q_read(r, s)))
        LA = 6
        if tau:
            rd, red = gather_max(tau - 1)
            P += rd
        P += [o for u, o in rds if u < LA]
        if tau: P += red
        for g in cfg.pgs:
            if not stream: break
            x = take()
            m, o = x[0]
            if m is not None: G.put_first(g - 1, m0op(m))
            G.put_mem(g, o)
            for y, _ in x[1:]: G.val[g].append(y)
        gi = 0
        for u, o in rds:
            if u < LA: continue
            while G.cost(gi) >= 8: gi += 1
            assert gi <= u - LA + 2, (tau, u, gi)
            G.put_mem(gi, o)
        tasks = []
        if tau:
            qs = [(a, 2*tau - 2 + k) for k in range(2) for a in range(2)]
            tasks, la = softmax_tasks(qs, [0] * 4, {2*tau - 2: 0, 2*tau - 1: 2})
            if tau == 2:
                c1 = Task(Op(f"v_max3_f32 v{X0+12}, v{vTs[0]}, v{vTs[1]}, v{vTs[2]}"), [la[2]], 0, 900)
                c2 = Task(Op(f"v_max_f32 v{X0+12}, v{X0+12}, v{vTs[3]}"), [c1, la[3]], 0, 901)
                c3 = Task(Op(f"v_cmp_nge_f32 vcc, s{sTh}, v{X0+12}"), [c2], 0, 902)
                tasks += [c1, c2, c3]
        mx = []
        for k, m in enumerate((m0r, m1r)):
            b = vS(0, 2*tau + k)
            x = Task(Op(f"v_max3_f32 v{m}, v{b}, v{b+1}, v{b+2}"), [], 8 * k + 11, -20 + k)
            y = Task(Op(f"v_max_f32 v{m}, v{m}, v{b+3}"), [x], 0, -18 + k)
            mx += [x, y]
        tailops = []
        st = red_pair(m0r, m1r, m2r, "v_max_f32")
        fin = [st[0][0], st[1][0], st[2][0], st[3][0], st[4][0], Op(f"v_mul_f32 v{m0r}, s{sC}, v{m0r}")]
        mw = Op(f"ds_write_b32 v{vSx}, v{m0r} offset:{tau*512}", tag=("Mw", 0, tau), cost=8)
        if tau < 2:
            prev = [mx[1], mx[3]]
            for i, o in enumerate(fin):
                t = Task(o, prev, [22, 23, 24, 26, 27, 28][i], -10 + i); mx.append(t); prev = [t]
        else:
            b = vS(1, 4)
            x = Task(Op(f"v_max3_f32 v{m0r}, v{m0r}, v{b}, v{b+1}"), [mx[1]], 27, -10)
            y = Task(Op(f"v_max3_f32 v{m0r}, v{m0r}, v{b+2}, v{b+3}"), [x], 27, -9)
            mx += [x, y]
            b = vS(1, 5)
            tailops = [Op(f"v_max3_f32 v{m1r}, v{m1r}, v{b}, v{b+1}"), Op(f"v_max3_f32 v{m1r}, v{m1r}, v{b+2}, v{b+3}"), Op("s_nop 1"),
                       fin[0], fin[1], fin[2], Op("s_nop 1"), fin[3], fin[4], fin[5], mw]
        G.cap = cfg.pcap
        G.schedule(tasks + mx, 32)
        if tau < 2: G.put_mem(mx[-1].gap + 1, mw)
        for u, (r, a, s) in enumerate(order):
            needs = ([("Kr", 1, a, s)] if tau == 0 and r == 0 else []) + ([("Qr", 0, r, s)] if a == 0 else [])
            A(mfma(v4(vS(a, r)), a4(SETS[a] + 4*s), a4(aQ(r, s)), "0" if s == 0 else v4(vS(a, r))), needs=needs)
            P += G.ops(u)
        P += stamp(cfg, 2 + 2 * tau, 1)
        if tau == 2:
            if cfg.klate: A("s_nop 7")
            else:
                for s in range(8): P.append(k_read(0, s, 2))
        P += G.ops(32)
        P += tailops
    A("s_cbranch_vccnz L_notify0")
    A("L_notified0:")
    P += stamp(cfg, 2)
    A("s_barrier", needs=[("Mw", 0, 2)] + [("Qr", 0, 4 + k, s) for k in range(2) for s in range(8)])
    rd, red = gather_max(2)
    P += rd
    A(f"ds_read_b32 v{vFlag}, v{vFlagA}", tag=("F", 0))
    tasks, _ = softmax_tasks([(a, 4 + k) for k in range(2) for a in range(2)], [0] * 4, {4: 0, 5: 2})
    st = red + [Op(f"v_cmp_ne_u32 vcc, 0, v{vFlag}", needs=[("F", 0)])] + linear(tasks)
    stream += late
    nd = len([x for x in stream if x[1] is not None])
    keep = st[-16:] if cfg.klate else []
    if cfg.klate: st = st[:-16]
    n = len(st) // nd + 1
    for i in range(nd):
        P += flat(take()) + st[i * n:(i + 1) * n]
    if cfg.klate:
        for s in range(8): P.append(k_read(0, s, 2))
    P += keep
    P.append(W(lgkm=0))
    A("s_cbranch_vccnz L_slow")
    P += stamp(cfg, 3)

    Lp = [Op(".p2align 6"), Op("L_loop:")] + body(cfg)
    if cfg.lstamps:
        Lp.append(Op("s_waitcnt lgkmcnt(0)", "salu"))
        Lp.append(Op(f"s_cmp_lg_u32 s{sT}, {cfg.lt + 1}"))
        Lp.append(Op("s_cbranch_scc1 L_nocopy"))
        for i in range(7):
            src = 4 + 2*i if i < 4 else 88 + 2*(i-4) + 8
            Lp.append(Op(f"v_writelane_b32 v{vDbg}, s{src}, {i}"))
        Lp.append(Op("L_nocopy:"))
        Lp.append(Op(f"s_cmp_lt_u32 s{sT}, 6"))
    Lp += [Op("s_cbranch_vccnz L_slow"), Op("L_slow_ret:"), Op("s_cbranch_scc1 L_loop")]
    Lx = [Op(f"s_cmp_eq_u32 s{sT}, 6"), Op("s_cbranch_scc1 L_switch")]
    Sw = [Op("L_switch:"), Op(f"s_mov_b32 s{sK}, s{sV}"), Op(f"s_mov_b32 s{sK+1}, s{sV+1}"), Op(f"v_add_u32 v{vKdma}, 0x10000, v{vVdma}")]
    for q in range(4):
        for n in range(4):
            Sw.append(Op(f"s_sub_u32 s{sKo(q,n)}, s{sVo(4*q + n)}, {32*n}"))
    Sw.append(Op("s_mov_b32 s3, 0x40000000"))
    sB = [79, 80, 81, 82]; sPb = [None, sM, sG, sU]
    vF0 = [X0 + 13, X0 + 14, X0 + 15, vA]
    Sw.append(Op(f"s_sub_u32 s{sX}, s{sKm0[0]}, s{sVm0[0]}"))
    Sw.append(Op(f"v_lshrrev_b32 v{vB}, 5, v{vLane}"))
    Sw.append(Op(f"v_lshlrev_b32 v{vB}, 5, v{vB}"))
    for i in range(4):
        Sw += [Op(f"s_add_u32 s{sY}, s{sW}, {i}"), Op(f"s_and_b32 s{sY}, s{sY}, 3"), Op(f"s_mul_i32 s{sB[i]}, s{sY}, 4224"), Op(f"s_add_u32 s{sB[i]}, s{sB[i]}, s{sX}")]
        if i: Sw.append(Op(f"s_mul_i32 s{sPb[i]}, s{sY}, 6144"))
    for dt in range(4): Sw.append(Op(f"v_add3_u32 v{vF0[dt]}, v{vVrd[dt]}, v{vB}, s{sB[0]}"))
    Sw.append(Op("s_branch L_loop"))

    F = []; A = lambda t, **k: F.append(Op(t, **k))
    F += stamp(cfg, 4) + stamp(cfg, 1, 2)
    vOw, vOr = vKdma, vVdma
    vFa = lambda i, dt: vF0[dt] if i == 0 else vS(0, 3) + 4 * (i - 1) + dt
    vPa = lambda i: vS(0, 3) + 12 + i
    allK = [("K", 1, u, j) for u in range(4) for j in range(4)]
    def fv_read(i, dt, half):
        return Op(f"ds_read_b64_tr_b16 {a4(fV(i, dt) + 2*half, 2)}, v{vFa(i, dt)} offset:{half*2112}", tag=("Vr", 0, i, dt, half), needs=allK)
    def fp_read(i, r):
        return Op(f"ds_read_b128 {a4(fP(i, r))}, v{vPa(i)} offset:{r*1024}", tag=("Pr", 0, i, r))
    order = [(r, dt, 0) for dt in range(4) for r in range(6)]
    order += [(r, dt, i) for r in range(6) for dt in range(4) for i in (1, 2, 3)]
    NG = 96 + 40
    G = Gaps(NG)
    F += [fv_read(0, dt, h) for dt in range(4) for h in range(2)]
    for i in (1, 2, 3):
        for dt in range(4): A(f"v_add3_u32 v{vFa(i, dt)}, v{vVrd[dt]}, v{vB}, s{sB[i]}")
        A(f"v_add_u32 v{vPa(i)}, s{sPb[i]}, v{vPrd}")
    lo, lw = l_publish()
    F += lo[:6]
    FB = cfg.fbar
    for r in range(6): G.put_mem(cfg.fpw[r], p_write(r, 0))
    gl = [g for g in range(FB) if g not in cfg.fpw]
    for k in range(5):
        G.val[gl[k]] += lo[6 + 3 * k:9 + 3 * k]
    for k, o in enumerate(lw): G.put_mem(gl[5 + k], o)
    pub = [("Pw", 0, r) for r in range(6)] + [("Lw", 0, tau) for tau in range(3)]
    G.put_first(FB, Need(pub))
    G.put_mem(FB, Op("s_barrier", needs=pub))
    firstuse = {}
    for u, (r, dt, i) in enumerate(order):
        firstuse.setdefault(("Pr", 0, i, r), u)
        for h in range(2): firstuse.setdefault(("Vr", 0, i, dt, h), u)
    prs = [fp_read(i, r) for r in range(6) for i in (1, 2, 3)]
    lrs = [gather_reads(r, vS(0, 0) + 4*r, SC1 - SC0, "Lr") for r in range(6)]
    for k, o in enumerate(prs[:3] + lrs[:1]): G.put_mem(FB + (k + 1) // 2, o); o.gap = FB + (k + 1) // 2
    vr = sorted([fv_read(i, dt, h) for i in (1, 2, 3) for dt in range(4) for h in range(2)], key=lambda o: firstuse[o.tag])
    gi = 0
    for o in vr:
        while len(G.mem[gi]) >= 2 or any(x.kind in ("dsw", "bar") for x in G.mem[gi]): gi += 1
        assert gi <= firstuse[o.tag] - 4, (gi, o.tag)
        G.put_mem(gi, o)
    for r, o in enumerate(lrs): firstuse[o.tag] = 24 + 12 * r + 2
    rest = sorted(prs[3:] + lrs[1:], key=lambda o: firstuse[o.tag])
    gi = FB + 3
    for o in rest:
        g = max(gi, firstuse[o.tag] - 11)
        while G.cost(g) >= 4: g += 1
        G.put_mem(g, o); gi = g; o.gap = g
    for r in range(6): G.put_first(24 + 12 * r - 1, Need([("Pr", 0, i, r) for i in (1, 2, 3)]))
    setup = [f"v_and_b32 v{t0}, 15, v{vLane}", f"v_lshrrev_b32 v{t1}, 4, v{vLane}", f"v_mul_u32_u24 v{t0}, {OST}, v{t0}",
             f"v_lshrrev_b32 v{t2}, 3, v{vLane}", f"v_lshl_add_u32 v{t0}, v{t1}, 3, v{t0}", f"v_mul_u32_u24 v{t2}, {OST}, v{t2}",
             f"v_add_u32 v{vOw}, s{sVm0[0]}, v{t0}", f"v_and_b32 v{t1}, 7, v{vLane}", f"v_lshl_add_u32 v{t2}, v{t1}, 4, v{t2}",
             f"v_add_u32 v{vOr}, s{sVm0[0]}, v{t2}"]
    for k, x in enumerate(setup): G.val[FB - 3 + k].append(Op(x))
    tasks = []
    for k in range(12): G.put_first(2 + k, Op(f"s_mov_b32 s{sKo(0,0) + k}, {k * 4096}"), 0)
    rc = []
    for r in range(6):
        b = vS(0, 0) + 4 * r; lg = lrs[r].gap + 5; pr = 100 + (24 + 12 * r) * 10 - 60
        x = Task(Op(f"v_add_f32 v{b}, v{b}, v{b+1}", needs=[("Lr", 0, r)]), [], lg, pr)
        y = Task(Op(f"v_add_f32 v{b+2}, v{b+2}, v{b+3}", needs=[("Lr", 0, r)]), [], lg, pr + 1)
        z = Task(Op(f"v_add_f32 v{b}, v{b}, v{b+2}"), [x, y], lg, pr + 2)
        w = Task(Op(f"v_rcp_f32 v{vL[r]}, v{b}"), [z], lg, pr + 3)
        tasks += [x, y, z, w]; rc.append(w)
    lastuse = {}
    for u, (r, dt, beta) in enumerate(order): lastuse[(r, dt)] = u
    memops = []
    for (r, dt), u in sorted(lastuse.items(), key=lambda x: x[1]):
        b = vO(dt, r); e = u + 3
        if e > 95: e = 97
        mu = [Task(Op(f"v_mul_f32 v{b+i}, v{b+i}, v{vL[r]}"), [rc[r]], e, 100 + u * 10 + i) for i in range(4)]
        cv = [Task(Op(f"v_cvt_pk_bf16_f32 v{b+i}, v{b+2*i}, v{b+2*i+1}"), mu[:2*i+2], e, 100 + u * 10 + 14 + i) for i in range(2)]
        cv[1].deps.append(cv[0])
        tasks += mu + cv
        memops.append((r, dt, cv))
    G.cap = cfg.fcap
    G.schedule(tasks, NG - 1, NG)
    allV = [("V", 0, p) for p in range(8 + cfg.drot)]
    lastw = {}
    for r, dt, cv in memops:
        g = cv[1].gap + 1
        G.put_mem(g, Op(f"ds_write_b64 v{vOw}, {v4(vO(dt, r), 2)} offset:{r*16*OST + dt*32}", tag=("Ow", 0, r, dt), needs=allV, cost=12))
        lastw[r] = max(lastw.get(r, 0), g)
    for r in range(6):
        g = lastw[r] + 1
        rb = vPf(0, 0) + 8 * (r % 3)
        for i in range(2):
            G.put_mem(g, Op(f"ds_read_b128 {v4(rb + 4*i)}, v{vOr} offset:{(r*16 + 8*i)*OST}", tag=("Or", 0, r, i)))
            G.put_mem(min(g + 5 + i, G.n - 1), Op(sq(f"buffer_store_dwordx4 {v4(rb + 4*i)}, v{vOut}, {s4(sO)}, s{sKo(0,0) + r*2 + i} offen {cfg.opol}"), needs=[("Or", 0, r, i)]))
    for u, (r, dt, beta) in enumerate(order):
        A(mfma(v4(vO(dt, r)), a4(fV(beta, dt)), a4(fP(beta, r)) if beta else v4(vPk(r)), v4(vO(dt, r))),
          needs=([("Pr", 0, beta, r)] if beta else []) + [("Vr", 0, beta, dt, 0), ("Vr", 0, beta, dt, 1)])
        if u in (0, 24, 48): F += stamp(cfg, {0: 2, 24: 3, 48: 4}[u], 2)
        F += G.ops(u)
    F += stamp(cfg, 5, 2)
    F += G.ops(96)
    A("s_nop 7")
    for g in range(97, G.n): F += G.ops(g)
    if cfg.verbose: print("final costs", [G.cost(g) for g in range(G.n)], file=sys.stderr)
    if cfg.stamps:
        F += stamp(cfg, 5) + stamp(cfg, 6, 2)
        F.append(W(vm=0))
        F += stamp(cfg, 6)
        A("s_memrealtime s[6:7]")
        F.append(W(lgkm=0))
        A(f"s_mov_b32 s{sWS+2}, {256 if cfg.dbg else 0x1000000}"); A(f"s_mov_b32 s{sWS+3}, 0x20000")
        A("v_mov_b32 v0, s34"); A("v_mov_b32 v1, s6")
        if cfg.lstamps:
            for i in range(7): A(f"v_readlane_b32 s{sSt + 2*i}, v{vDbg}, {i}")
            A("s_nop 3")
        for i in range(1, 7):
            A(f"s_sub_u32 s{sX}, s{sSt+2*i}, s{sSt}")
            A(f"v_mov_b32 v{1+i}, s{sX}")
        if cfg.dbg:
            A(f"s_mov_b32 s{sX}, 4096"); A("s_cmp_eq_u32 s2, 0"); A(f"s_cselect_b32 s{sX}, 0, s{sX}")
            A("s_cmp_eq_u32 s2, 200"); A(f"s_cselect_b32 s{sX}, 32, s{sX}")
            A(f"s_lshl_b32 s{sY}, s{sW}, 12"); A(f"s_add_u32 s{sX}, s{sX}, s{sY}")
        else:
            A(f"s_lshl_b32 s{sX}, s2, 7"); A(f"s_lshl_b32 s{sY}, s{sW}, 5"); A(f"s_add_u32 s{sX}, s{sX}, s{sY}")
        A(f"v_mov_b32 v8, s{sX}")
        A(f"v_cmp_eq_u32 vcc, 0, v{vLane}")
        A("s_and_saveexec_b64 s[4:5], vcc")
        A(f"buffer_store_dwordx4 v[0:3], v8, {s4(sWS)}, 0 offen")
        A(f"buffer_store_dwordx4 v[4:7], v8, {s4(sWS)}, 0 offen offset:16")
    A("L_end:")
    A("s_endpgm")

    def notify(sfx):
        return [Op(f"L_notify{sfx}:"), Op(f"v_mov_b32 v{vFlag}, 1"), Op(f"ds_write_b32 v{vFlagA}, v{vFlag}"), W(lgkm=0), Op(f"s_branch L_notified{sfx}")]
    def strip(ops):
        for o in ops: o.needs = []; o.tag = None
        return ops
    S = [Op("L_slow:"), W(lgkm=0), Op("s_barrier"), Op("s_nop 7")]
    for tau in range(3): S += strip(max_local(tau, False, X0))
    S += [W(lgkm=0), Op("s_barrier")]
    S.append(Op(f"v_mov_b32 v{vFlag}, 0"))
    S.append(Op(f"ds_write_b32 v{vFlagA}, v{vFlag}"))
    gb = vPf(0, 0)
    for r in range(6): S += strip([gather_reads(r, gb + 4*r, 0, "Mr")])
    S.append(W(lgkm=0))
    for r in range(6): S.append(Op(f"v_max3_f32 v{gb+4*r}, v{gb+4*r}, v{gb+4*r+1}, v{gb+4*r+2}"))
    for r in range(6): S.append(Op(f"v_max3_f32 v{gb+4*r}, v{gb+4*r}, v{gb+4*r+3}, v{vMc[r]}"))
    for r in range(6): S.append(Op(f"v_sub_f32 v{X0+r}, v{vMc[r]}, v{gb+4*r}"))
    for r in range(6): S.append(Op(f"v_exp_f32 v{X0+r}, v{X0+r}"))
    for r in range(6): S.append(Op(f"v_mov_b32 v{vMc[r]}, v{gb+4*r}"))
    for r in range(6): S.append(Op(f"v_mul_f32 v{vL[r]}, v{vL[r]}, v{X0+r}"))
    for r in range(6):
        for dt in range(4):
            for i in range(4): S.append(Op(f"v_mul_f32 v{vO(dt,r)+i}, v{vO(dt,r)+i}, v{X0+r}"))
    tasks, _ = softmax_tasks([(a, r) for r in range(6) for a in range(2)], [0] * 12, {r: 2 * r for r in range(6)})
    S += linear(tasks)
    S += [Op(f"s_cmp_lt_u32 s{sT}, 6"), Op("s_branch L_slow_ret")]

    trace = [(o, -1) for o in P]
    for t in range(7): trace += [(o, t) for o in Lp]
    trace += [(o, 7) for o in F]
    derive_waits(trace)
    errs = check_hazards(P + Lp + Lp + Lx + Sw + Lp + Lx + F) + check_hazards(Lp + S + Lp) + check_hazards(Lp + S + Lx + F) + check_hazards(P + S + Lp)
    for e in sorted(set(errs)): print("HAZARD", e, file=sys.stderr)
    assert not errs
    hdr = [l for l in open("standalone__gqa_softmax__near_ridge.s.ref").read().splitlines() if l.startswith(";") and "@launch grid" not in l] if cfg.refhdr else []
    L = header(256, 256, LDS_TOTAL, hdr)
    L += emit(P) + emit(Lp) + emit(Lx) + emit(F) + emit(Sw) + ["L_code_end:"] + emit(notify("")) + emit(notify("0")) + emit(S)
    L += footer(512, 256)
    return "\n".join(L) + "\n"

if __name__ == "__main__":
    cfg = Cfg()
    out = sys.argv[1]
    for a in sys.argv[2:]:
        k, v = a.split("=", 1)
        if not isinstance(getattr(Cfg, k), str): v = eval(v)
        setattr(cfg, k, v)
    open(out, "w").write(build(cfg))
```

```python
import sys, math, struct
from fw import *
from asmlib import header, footer, NAME

def f2u(x): return struct.unpack("<I", struct.pack("<f", x))[0]

class Cfg:
    kpol = ""; vpol = ""; qpol = "nt"; opol = "nt"
    stamps = False; dbg = False; lstamps = None; lt = 3; spin_at = -1; spin_us = 0; rt = 0; smode = 0
    thresh = 65536.0
    refhdr = False
    cpf = 1
    verbose = 0
    mask = 1
    ga = 184
    gb = 74
    pwg = [0, 12, 24, 36, 48, 60]
    dpos = [b + 4 * i for b in (16, 50, 112, 146) for i in range(8)]
    drot = 0
    rd0 = [3, 4, 4, 31]
    rdspan = [8, 38, 38, 8]
    ovf0 = 11
    fcap = 12
    mask2 = 0
    klate = 1
    abl = ""
    pkm = 0
    seqs = None
    early = []
    pfree = 1
    nofma = 0
    fbar = 19
    fpw = [0, 3, 6, 9, 12, 15]
    npre = 12
    pgs = [1, 5, 9, 13, 18, 22, 26, 30]
    pcap = 12

KW = 16896; KB = 0
VB = 4 * KW; VW = 16384
PB = VB + 4 * VW
SC0 = PB + 24576
SC1 = SC0 + 2048
LDS_TOTAL = SC1 + 2048
FLAG = 1024
KIMM = [0, 1056, 2112, 3168]
def q_quarter_base(tau, q):
    if tau == 0: return PB + q * 4224
    return VB + q * VW + VW - (3 - tau) * 4224
OST = 144
PL = 4224

def vO(dt, r): return (r * 4 + dt) * 4
def vS(a, r): return 96 + (r * 2 + a) * 4
def vPk(r): return 144 + 4 * r
def vPf(slot, b): return 168 + slot * 8 + 4 * b
vMc = list(range(192, 198)); vL = list(range(198, 204)); vTs = list(range(204, 210))
vKrd, vPrd, vPwr, vKdma, vVdma, vSx, vSr, vFlagA, vFlag, vOut, vLane, vA, vB = range(210, 223)
vVrd = [224, 225, 226, 227]
vDbg = 223
T0 = 228; NT = 12
X0 = 240
def aQ(r, s): return (r * 8 + s) * 4
SETS = [192, 224]
sQ, sK, sV, sO = 12, 16, 20, 24
sW, sG, sU, sT, sC, sTh = 28, 29, 30, 31, 32, 33
sKm0 = [36, 37, 38, 39]; sVm0 = [40, 41, 42, 43]
def sKo(q, n): return 44 + q * 4 + n
def sVo(p): return 60 + p
sX, sY, sZ = 76, 77, 78
sKs, sVs, sKd, sVd, sM = 79, 80, 81, 82, 83
BIAS = 4096
LST = [8, 10, 12, 14, 96, 98, 100]
sTk, sTv, sIk, sIv = 4, 5, 6, 7
def nxt(t, d): return [Op(f"s_bfe_i32 s{d}, s{t}, 0x40000"), Op(f"s_lshl_b32 s{d}, s{d}, 16"), Op(f"s_lshr_b32 s{t}, s{t}, 4")]
sMq = 33
sWS = 84; sSt = 88

def v4(b, n=4): return f"v[{b}:{b+n-1}]"
def a4(b, n=4): return f"a[{b}:{b+n-1}]"
def s4(b): return f"s[{b}:{b+3}]"
def sq(t): return " ".join(t.split())
def mfma(d, a, b, c): return f"v_mfma_f32_16x16x32_bf16 {d}, {a}, {b}, {c}"

def k_read(a, s, toff):
    return Op(f"ds_read_b128 {a4(SETS[a] + 4*s)}, v{vKrd} offset:{a*8448 + s*64}", tag=("Kr", toff, a, s),
              needs=[("K", toff, 2*a + u, j) for u in range(2) for j in range(4)])
def k_dma(cfg, q, n, toff, needs=()):
    return Op(sq(f"buffer_load_dwordx4 v{vKdma}, {s4(sK)}, s{sKo(q,n)} offen offset:{KIMM[n]} {cfg.kpol} lds"), tag=("K", toff, q, n), needs=needs)
def v_dma(cfg, p, toff, needs=()):
    return Op(sq(f"buffer_load_dwordx4 v{vVdma}, {s4(sV)}, s{sVo(p)} offen offset:{(p%4)*1024} {cfg.vpol} lds"), tag=("V", toff, p), needs=needs)
def v_read(dstbase, beta, dt, half, toff):
    p = 4 * beta + 2 * half
    return Op(f"ds_read_b64_tr_b16 {a4(dstbase + 2*half, 2)}, v{vVrd[dt]} offset:{p*1024}", tag=("Vr", toff, beta, dt, half),
              needs=[("V", toff, p), ("V", toff, p + 1)])
def p_read(dst, beta, r, toff):
    return Op(f"ds_read_b128 {dst}, v{vPrd} offset:{(beta*6 + r)*1024}", tag=("Pr", toff, beta, r))
def p_write(r, toff):
    return Op(f"ds_write_b128 v{vPwr}, {v4(vPk(r))} offset:{r*1024}", tag=("Pw", toff, r))

NOFMA = 'nofma=1' in sys.argv
class Task:
    def __init__(self, op, deps=(), earliest=0, prio=0):
        self.op = op; self.deps = list(deps); self.earliest = earliest; self.prio = prio; self.gap = None

def softmax_tasks(quads, earliest, first_quad_of):
    tasks = []; fm = []; ex = []; user = []
    last_add = {}
    e = 0
    for qi, (a, r) in enumerate(quads):
        for i in range(4):
            t = T0 + e % NT
            deps = user[e - NT] if e >= NT else []
            if NOFMA and len(quads) == 12 and earliest[0]:
                x = Task(Op(f"v_exp_f32 v{t}, v{vS(a,r)+i}"), deps, earliest[qi], e * 4 + 5)
                ex.append(x); user.append([]); tasks.append(x)
            else:
                f = Task(Op(f"v_fma_f32 v{t}, v{vS(a,r)+i}, s{sC}, -v{vMc[r]}"), deps, earliest[qi], e * 4)
                x = Task(Op(f"v_exp_f32 v{t}, v{t}"), [f], 0, e * 4 + 5)
                fm.append(f); ex.append(x); user.append([])
                tasks += [f, x]
            first = first_quad_of[r] == qi
            if first and i == 0: pass
            else:
                if first and i == 1:
                    ad = Task(Op(f"v_add_f32 v{vTs[r]}, v{T0 + (e-1) % NT}, v{t}"), [ex[e - 1], x], 0, e * 4 + 10)
                    user[e - 1].append(ad)
                    ad.first_ts = r
                else:
                    ad = Task(Op(f"v_add_f32 v{vTs[r]}, v{vTs[r]}, v{t}"), [x, last_add[r]], 0, e * 4 + 10)
                last_add[r] = ad; user[e].append(ad); tasks.append(ad)
            if i % 2 == 1:
                c = Task(Op(f"v_cvt_pk_bf16_f32 v{vPk(r) + 2*a + i//2}, v{T0 + (e-1) % NT}, v{t}"), [ex[e - 1], x], 0, e * 4 + 11)
                c.pk = (r, 2 * a + i // 2)
                user[e - 1].append(c); user[e].append(c); tasks.append(c)
            e += 1
    return tasks, last_add

def linear(tasks):
    return [t.op for t in sorted(tasks, key=lambda t: t.prio)]

class Gaps:
    def __init__(self, n, cap=8):
        self.n = n; self.cap = cap
        self.first = [None] * n; self.mem = [[] for _ in range(n)]; self.val = [[] for _ in range(n)]; self.tail = [[] for _ in range(n)]
    def cost(self, g): return sum(o.cost for o in self.mem[g] + self.val[g] + self.tail[g])
    def put_first(self, g, op, lo=None):
        lo = g if lo is None else lo
        for x in range(g, lo - 1, -1):
            if self.first[x] is None:
                self.first[x] = op; return x
            if op.kind == "pseudo" and self.first[x].kind == "pseudo":
                self.first[x].needs += op.needs; return x
        raise ValueError(f"no free first slot near {g} for {op.text}")
    def put_mem(self, g, op): self.mem[g].append(op)
    def schedule(self, tasks, deadline, ovf0=0):
        todo = sorted(tasks, key=lambda t: t.prio)
        for g in range(self.n):
            room = self.cap - self.cost(g)
            if g < ovf0: pass
            elif g < deadline:
                rem = sum(t.op.cost for t in todo)
                capleft = sum(max(0, self.cap - self.cost(x)) for x in range(g, deadline))
                if rem > capleft - 12: room += 4
                if rem > capleft + 2 * (deadline - g): room += 4
            else: room = 1000
            while True:
                ready = [t for t in todo if t.earliest <= g and all(d.gap is not None and (d.gap < g or g >= deadline) for d in t.deps) and t.op.cost <= room]
                if not ready: break
                big = [t for t in ready if t.op.cost == 8]
                t = big[0] if big and big[0].prio <= ready[0].prio + 40 else ready[0]
                t.gap = g; self.val[g].append(t.op); room -= t.op.cost; todo.remove(t)
        assert not todo, [t.op.text for t in todo]
    def ops(self, g):
        return ([self.first[g]] if self.first[g] else []) + self.mem[g] + self.val[g] + self.tail[g]

def red_pair(x0, x1, t, op):
    return [[Op(f"v_permlane32_swap_b32 v{x0}, v{x1}")], [Op(f"{op} v{x0}, v{x0}, v{x1}")], [Op(f"v_mov_b32 v{t}, v{x0}")],
            [Op(f"v_permlane16_swap_b32 v{x0}, v{t}")], [Op(f"{op} v{x0}, v{x0}, v{t}")]]

def max_local(tau, first, base):
    o = []
    m = [base, base + 1]
    for i in range(4):
        for k in range(2):
            r = 2 * tau + k; b = vS(0, r)
            if i == 0: o.append(Op(f"v_max3_f32 v{m[k]}, v{b}, v{b+1}, v{b+2}"))
            elif i < 3: o.append(Op(f"v_max3_f32 v{m[k]}, v{m[k]}, v{b+2*i+1}, v{b+2*i+2}"))
            else: o.append(Op(f"v_max_f32 v{m[k]}, v{m[k]}, v{b+7}"))
    st = red_pair(m[0], m[1], base + 2, "v_max_f32")
    o += [Op("s_nop 1")] + st[0] + st[1] + st[2] + [Op("s_nop 1")] + st[3] + st[4]
    o.append(Op(f"v_mul_f32 v{m[0]}, s{sC}, v{m[0]}"))
    o.append(Op(f"ds_write_b32 v{vSx}, v{m[0]} offset:{tau*512}", tag=("Mw", 0, tau), cost=8))
    return o
def gather_reads(r, dst, off, tag):
    return Op(f"ds_read_b128 {v4(dst)}, v{vSr} offset:{off + r*256}", tag=(tag, 0, r))

def stamp(cfg, i, mode=0):
    if not cfg.stamps or (i and mode != cfg.smode): return []
    o = [Op(f"{'s_memrealtime' if cfg.rt else 's_memtime'} s[{sSt + 2*i}:{sSt + 2*i + 1}]")]
    if cfg.spin_at == i:
        o += [Op("s_waitcnt lgkmcnt(0)", "salu"), Op(f"L_spin{i}_{id(o)}:"), Op("s_sleep 2"), Op("s_memrealtime s[86:87]"), Op("s_waitcnt lgkmcnt(0)", "salu"),
              Op("s_sub_u32 s86, s86, s34"), Op(f"s_cmp_lt_u32 s86, {int(cfg.spin_us*100)}"), Op(f"s_cbranch_scc1 L_spin{i}_{id(o)}")]
    return o

def fV(beta, dt): return (dt * 4 + beta) * 4
def fP(beta, r): return 64 + (r * 4 + beta) * 4
vPlw, vPlr = vA, vB
def pl_write(r): return Op(f"ds_write_b128 v{vPlw}, {v4(vPk(r))} offset:{r*1024}", tag=("Plw", 0, r))
def pl_read(beta, r, toff): return Op(f"ds_read_b128 {a4(fP(beta, r))}, v{vPlr} offset:{beta*KW + r*1024}", tag=("Plr", toff, beta, r))
def l_publish():
    o = []
    for r in range(6): o.append(Op(f"v_add_f32 v{X0 + r}, v{vL[r]}, v{vTs[r]}"))
    sts = [red_pair(X0 + 2*tau, X0 + 2*tau + 1, X0 + 6 + tau, "v_add_f32") for tau in range(3)]
    for i in range(5):
        for tau in range(3): o += sts[tau][i]
    w = [Op(f"ds_write_b32 v{vSx}, v{X0 + 2*tau} offset:{SC1 - SC0 + tau*512}", tag=("Lw", 0, tau), cost=8) for tau in range(3)]
    return o, w

def dma_plan(cfg):
    seq = [(c, i) for c in (2, 3, 0, 1) for i in range(8)]
    plan = []
    for k in range(32):
        j = k + cfg.drot
        c, i = seq[j % 32]
        wrap = 1 if ((c in (2, 3) and j < 32) or j < 0) else 0
        plan.append((c, i, wrap))
    return plan

def body(cfg):
    sfx = ""
    G = Gaps(192)
    MF = []
    for a in range(2):
        for r in range(6):
            for s in range(8):
                MF.append(Op(mfma(v4(vS(a, r)), a4(SETS[a] + 4*s), a4(aQ(r, s)), "0" if s == 0 else v4(vS(a, r))),
                             needs=[("Kr", 1, a, s)] if r == 0 else []))
    for hb in range(2):
        for r in range(6):
            k = 6 * hb + r
            for dt in range(4):
                for b in range(2):
                    beta = 2 * hb + b
                    n = [("Pr", 0, beta, r)] if dt == 0 else []
                    if r == 0: n += [("Vr", 0, beta, dt, 0), ("Vr", 0, beta, dt, 1)]
                    MF.append(Op(mfma(v4(vO(dt, r)), a4(SETS[hb] + 4*(2*dt + b)), v4(vPf(k % 3, b)), v4(vO(dt, r))), needs=n))
    GA = cfg.ga; GB = cfg.gb
    pwg = cfg.pwg
    for r in range(6): G.put_mem(pwg[r], p_write(r, 0))
    G.put_mem(GB, Op("s_barrier", needs=[("Pw", 0, r) for r in range(6)]))
    G.put_first(GB, Need([("Pw", 0, r) for r in range(6)]))
    G.put_mem(GA, Op("s_barrier", needs=[("Pr", 0, 2, 5), ("Pr", 0, 3, 5)]))
    G.put_mem(GA + 1, Op(f"ds_read_b32 v{vFlag}, v{vFlagA}", tag=("F", 0)))
    def free_at(g, lim=0):
        while G.cost(g) > lim: g += 1
        return g
    def chunk_dma(c, i, wrap):
        if c in (0, 3):
            a = 1 if c == 0 else 0; toff = (1 if c == 0 else 2) - wrap; u, j = 2*a + i // 4, i % 4
            rd = [("Kr", toff, a, s) for s in range(8)]
            return (sKm0[u] if j == 0 else None), k_dma(cfg, u, j, toff + 1, needs=rd)
        hb = c - 1; p = 8 * hb + i; toff = -wrap
        rd = [("Vr", toff, p // 4, dt, (p % 4) // 2) for dt in range(4)]
        return (sVm0[p // 4] if p % 4 == 0 else None), v_dma(cfg, p, toff + 1, needs=rd)
    lastd = {}
    rd0 = list(cfg.rd0); rdspan = list(cfg.rdspan)
    prevg = -1
    for k, (c, i, wrap) in enumerate(dma_plan(cfg)):
        g = free_at(max(cfg.dpos[k], prevg + 2))
        m, o = chunk_dma(c, i, wrap)
        if k == 0 and m is None: m = sVm0[(8 * (c - 1) + i) // 4]
        if m is not None: G.put_first(g - 1, Op(f"s_mov_b32 m0, s{m}"), prevg + 1)
        G.put_mem(g, o); prevg = g
        if i == 7: lastd[c] = g
    for k in range(12):
        hb, r = divmod(k, 6)
        g = 96 + 8 * (k - 2)
        for b in range(2):
            g = free_at(g); G.put_mem(g, p_read(v4(vPf(k % 3, b)), 2*hb + b, r, 0)); g += 1
        assert g <= 96 + 8 * k - 6, (k, g)
        G.put_first(96 + 8 * k - 1, Need([("Pr", 0, 2*hb + b, r) for b in range(2)]), 96 + 8 * k - 4)
    for c in range(4):
        if c in (0, 3):
            a = 1 if c == 0 else 0; toff = 1 if c == 0 else 2
            rds = [[k_read(a, 2*q, toff), k_read(a, 2*q + 1, toff)] for q in range(4)]
        else:
            hb = c - 1
            rds = [[v_read(SETS[hb] + 4*(2*dt + j // 2), 2*hb + j // 2, dt, j % 2, 0) for dt in range(4)] for j in range(4)]
        for j in range(4):
            g = 48 * c + rd0[c] + (j * rdspan[c]) // 4
            for x, o in enumerate(rds[j]):
                dbl = False
                g = free_at(g, 4 if dbl else 0)
                if x == 0: G.put_first(g, Need(list(o.needs)), g - 3)
                G.put_mem(g, o)
                if not dbl: g += 1
                elif G.cost(g) >= 8: g += 2
            assert g <= 48 * c + 44, (c, j, g)
        G.put_first(48 * c + 47, Need([o.tag for rr in rds for o in rr]), 48 * c + 45)
    quads = [(a, r) for a in range(2) for r in range(6)]
    tasks, last_add = softmax_tasks(quads, [8 * i + 11 for i in range(12)], {r: r for r in range(6)})
    ladd = [Task(Op(f"v_add_f32 v{vL[r]}, v{vL[r]}, v{vTs[r]}"), [], 0, -100 + r) for r in range(6)]
    for t in tasks:
        if hasattr(t, "first_ts"): t.deps.append(ladd[t.first_ts])
        if hasattr(t, "pk"): t.earliest = max(t.earliest, pwg[t.pk[0]] + 1)
    tasks += ladd
    c1 = Task(Op(f"v_max3_f32 v{X0+12}, v{vTs[0]}, v{vTs[1]}, v{vTs[2]}"), [last_add[r] for r in range(3)], 0, 150)
    c2 = Task(Op(f"v_max3_f32 v{X0+12}, v{X0+12}, v{vTs[3]}, v{vTs[4]}"), [c1, last_add[3], last_add[4]], 0, 190)
    c3 = Task(Op(f"v_max_f32 v{X0+12}, v{X0+12}, v{vTs[5]}"), [c2, last_add[5]], 0, 1000)
    c4 = Task(Op(f"v_cmp_nge_f32 vcc, s{sTh}, v{X0+12}"), [c3], 0, 1001)
    tasks += [c1, c2, c3, c4]
    for c, v, d in ((0, vKdma, sIk), (2, vVdma, sIv)):
        assert lastd[c] < 191
        G.val[lastd[c] + 1].append(Op(f"v_add_u32 v{v}, s{d}, v{v}"))
    g = max(lastd[2] + 3, 56)
    for o in (nxt(sTv, sIv) + nxt(sTk, sIk) if cfg.seqs else []):
        while G.first[g] is not None: g += 1
        G.first[g] = o; g += 1
    assert g < min(lastd[0], 140)
    G.schedule(tasks, GA - 3, cfg.ovf0)
    gbr = c4.gap + 2
    while G.first[gbr] is not None: gbr += 1
    assert gbr <= GA, (c4.gap, gbr)
    G.first[gbr] = Op(f"s_cbranch_vccnz L_notify{sfx}")
    G.mem[gbr].insert(0, Op(f"L_notified{sfx}:"))
    G.put_first(149, Op(f"s_add_u32 s{sT}, s{sT}, 1"), 146)
    G.put_first(156, Op(f"s_cmp_lt_u32 s{sT}, 6"), 152)
    G.put_first(189, Need([("F", 0)]))
    G.val[189].append(Op(f"v_cmp_ne_u32 vcc, 0, v{vFlag}", needs=[("F", 0)]))
    costs = [G.cost(g) for g in range(192)]
    if cfg.verbose: print("loop est cycles", sum(max(16, 8 + c) for c in costs), costs, file=sys.stderr)
    L = []
    for g in range(192):
        L.append(MF[g])
        if cfg.lstamps and g in cfg.lstamps:
            i = cfg.lstamps.index(g)
            L.append(Op(f"s_memtime s[{LST[i]}:{LST[i] + 1}]"))
        L += G.ops(g)
    return L

def build(cfg):
    P = []; A = lambda t, **k: P.append(Op(t, **k))
    sQo = [79, 80, 81, 82]
    vQd = X0 + 15
    t0, t1, t2, t3 = T0, T0 + 1, T0 + 2, T0 + 3
    A("s_cmp_ge_u32 s2, 256"); A("s_cbranch_scc1 L_end")
    if cfg.stamps:
        A("s_memrealtime s[34:35]")
        P += stamp(cfg, 0)
        A(f"s_load_dwordx2 s[{sWS}:{sWS+1}], s[0:1], {32 if cfg.dbg else 40}")
    A("s_load_dwordx8 s[4:11], s[0:1], 0")
    if cfg.cpf:
        A(f"s_getpc_b64 s[{sX}:{sX+1}]")
        A("L_pc:")
        A(f"v_lshlrev_b32 v{X0}, 7, v0")
        A(f"v_min_u32 v{X0}, L_code_end - L_pc - 4, v{X0}")
        A(f"v_mov_b32 v{X0+1}, s{sX+1}")
        A(f"v_add_co_u32 v{X0}, vcc, s{sX}, v{X0}")
        A(f"v_and_b32 v{vLane}, 63, v0")
        A(f"v_lshrrev_b32 v{vA}, 6, v0")
        A(f"v_addc_co_u32 v{X0+1}, vcc, 0, v{X0+1}, vcc")
        A(f"global_load_dword v{vDbg}, v[{X0}:{X0+1}], off")
    else:
        A(f"v_and_b32 v{vLane}, 63, v0")
        A(f"v_lshrrev_b32 v{vA}, 6, v0")
        A("s_nop 0")
    A(f"v_readfirstlane_b32 s{sW}, v{vA}")
    A(f"s_and_b32 s{sU}, s2, 7"); A(f"s_lshl_b32 s{sU}, s{sU}, 5"); A(f"s_lshr_b32 s{sX}, s2, 3"); A(f"s_add_u32 s{sU}, s{sU}, s{sX}")
    A(f"v_lshrrev_b32 v{t1}, 5, v{vLane}")
    A(f"v_xor_b32 v{t1}, v{t1}, v{vLane}")
    A(f"v_lshlrev_b32 v{vKdma}, 4, v{t1}")
    A(f"s_mul_i32 s{sY}, s{sU}, 49152")
    A(f"s_lshl_b32 s{sX}, s{sW}, 12")
    A(f"s_add_u32 s{sX}, s{sY}, s{sX}")
    A(f"v_add_u32 v{vQd}, s{sX}, v{vKdma}")
    A(f"s_movk_i32 s{sQo[0]}, 96")
    A(f"s_mul_i32 s{sX}, s{sW}, 4224")
    A(f"s_add_u32 m0, s{sX}, {PB}")
    A(f"s_mov_b32 s{sQ+2}, {12582912 + 96}"); A(f"s_mov_b32 s{sQ+3}, 0x20000")
    A(f"s_lshl_b32 s{sKm0[0]}, s{sX}, 2")
    A(f"s_lshr_b32 s{sZ}, s{sU}, 2"); A(f"s_lshl_b32 s{sZ}, s{sZ}, 19")
    P.append(W(lgkm=0))
    A(f"s_sub_u32 s{sQ}, s4, 96"); A(f"s_subb_u32 s{sQ+1}, s5, 0")
    P += stamp(cfg, 1, 3)
    qso = [f"s{sQo[0]}", "64", "32", "0"]
    def q_dma(tau):
        return [Op(sq(f"buffer_load_dwordx4 v{vQd}, {s4(sQ)}, {qso[n]} offen offset:{KIMM[n]} {cfg.qpol} lds"), tag=("Q", 0, tau, n)) for n in range(4)]
    q0 = q_dma(0)
    P.append(q0[0])
    A(f"s_and_b32 s{sM}, s{sU}, {1 if cfg.mask else 0}"); A(f"s_mul_i32 s{sM}, s{sM}, 0xa000")
    if cfg.mask2:
        A(f"s_bfe_u32 s{sX}, s{sU}, 0x10001"); A(f"s_mul_i32 s{sX}, s{sX}, {cfg.mask2}"); A(f"s_xor_b32 s{sM}, s{sM}, s{sX}")
    A(f"s_lshl_b32 s{sX}, s{sW}, 14")
    A(f"s_add_u32 s{sVm0[0]}, s{sX}, {VB}")
    P.append(q0[1])
    A(f"s_and_b32 s{sT}, s{sM}, 0xc000"); A(f"s_xor_b32 s{sX}, s{sX}, s{sT}")
    sF = sQo[2]
    if cfg.seqs and any(q[0] for q in cfg.seqs):
        A(f"s_bitcmp1_b32 s{sU}, 2"); A(f"s_cselect_b32 s{sF}, {cfg.seqs[1][0]}, {cfg.seqs[0][0]}")
        A(f"s_bitcmp1_b32 s{sU}, 1"); A(f"s_cselect_b32 s{sF}, s{sF}, 0")
        A(f"s_lshl_b32 s{sF}, s{sF}, 16"); A(f"s_add_u32 s{sF}, s{sF}, s{sZ}")
    else: sF = sZ
    A(f"s_add_u32 s{sX}, s{sX}, s{sF}")
    A(f"v_add_u32 v{vKdma}, s{sX}, v{vKdma}")
    P.append(q0[2])
    A(f"s_sub_u32 s{sK}, s6, {BIAS}"); A(f"s_subb_u32 s{sK+1}, s7, 0")
    A(f"s_add_u32 s{sK+2}, s{sZ}, {524288 + BIAS}"); A(f"s_mov_b32 s{sK+3}, 0x20000")
    P.append(q0[3])
    A(f"s_and_b32 s{sT}, s{sM}, 0x3000")
    for u in range(2):
        if u: A(f"s_add_u32 s{sKm0[u]}, s{sKm0[0]}, {u*4224}"); A(f"s_xor_b32 s{sT}, s{sT}, 0x1000")
        A(f"s_mov_b32 m0, s{sKm0[u]}")
        for j in range(4):
            A(f"s_add_u32 s{sKo(u,j)}, s{sT}, {BIAS - 32*j}")
            P.append(k_dma(cfg, u, j, 1))
    P += stamp(cfg, 2, 3)
    for u in (2, 3):
        A(f"s_xor_b32 s{sT}, s{sT}, {0x3000 if u == 2 else 0x1000}")
        A(f"s_add_u32 s{sKm0[u]}, s{sKm0[0]}, {u*4224}")
        for j in range(4): A(f"s_add_u32 s{sKo(u,j)}, s{sT}, {BIAS - 32*j}")
    A(f"s_and_b32 s{sQo[1]}, s{sW}, 1"); A(f"s_lshl_b32 s{sQo[1]}, s{sQo[1]}, 7"); A(f"s_sub_u32 s{sQo[1]}, s{sVm0[0]}, s{sQo[1]}")
    A(f"v_add_u32 v{vQd}, 0x4000, v{vQd}")
    def pack(q): return sum(((q[i + 1] - q[i]) & 15) << (4 * i) for i in range(7))
    if cfg.seqs:
        A(f"s_bitcmp1_b32 s{sU}, 2"); A(f"s_mov_b32 s{sTk}, {hex(pack(cfg.seqs[0]))}"); A(f"s_cselect_b32 s{sTk}, {hex(pack(cfg.seqs[1]))}, s{sTk}")
        A(f"s_bitcmp1_b32 s{sU}, 1"); A(f"s_cselect_b32 s{sTk}, s{sTk}, 0x1111111")
        A(f"s_mov_b32 s{sTv}, s{sTk}")
        P += nxt(sTv, sIv) + nxt(sTk, sIk) + nxt(sTk, 3)
    else:
        A(f"s_mov_b32 s{sIk}, 0x10000"); A(f"s_mov_b32 s{sIv}, s{sIk}"); A(f"s_mov_b32 s3, s{sIk}")
    def k_half(a, toff, needs=()):
        return [(sKm0[2*a + u] if j == 0 else None, k_dma(cfg, 2*a + u, j, toff, needs=needs)) for u in range(2) for j in range(4)]
    def m0op(m): return Op(m if isinstance(m, str) else f"s_mov_b32 m0, s{m}")
    def flat(dm):
        o = []
        for m, d in dm:
            if d is None: o.append(m); continue
            if m is not None: o += [m0op(m), Op("s_nop 0")]
            o.append(d)
        return o
    def qm0(tau): return f"s_add_u32 m0, s{sQo[1]}, {VW - (3 - tau) * 4224}"
    plan = dma_plan(cfg)
    krd = lambda a: [("Kr", 1, a, s) for s in range(8)]
    stream = k_half(1, 1) + [(Op(f"v_add_u32 v{vKdma}, s{sIk}, v{vKdma}"), None)]
    stream += [(qm0(1) if n == 0 else None, o) for n, o in enumerate(q_dma(1))] + [(Op(f"v_add_u32 v{vQd}, 0x4000, v{vQd}"), None)]
    stream += [(qm0(2) if n == 0 else None, o) for n, o in enumerate(q_dma(2))]
    stream += k_half(0, 2, krd(0)) + k_half(1, 2, krd(1)) + [(Op(f"v_add_u32 v{vKdma}, s3, v{vKdma}"), None)]
    stream += [(sVm0[p // 4] if p % 4 == 0 else None, v_dma(cfg, p, 1)) for p in range(min(7, 8 + cfg.drot))]
    late = [(sVm0[p // 4] if p % 4 == 0 or p == 7 else None, v_dma(cfg, p, 1)) for p in range(7, 8 + cfg.drot)]
    def take():
        x = [stream.pop(0)]
        while stream and stream[0][1] is None: x.append(stream.pop(0))
        return x
    U = []; B = lambda t: U.append(Op(t))
    B(f"v_lshrrev_b32 v{t0}, 3, v{vLane}")
    B(f"v_lshlrev_b32 v{t0}, 9, v{t0}")
    B(f"v_lshrrev_b32 v{t1}, 4, v{vLane}")
    B(f"v_and_b32 v{t2}, 7, v{vLane}")
    B(f"s_lshl_b32 s{sG}, s{sW}, 7")
    B(f"s_add_u32 s{sY}, s{sY}, s{sG}")
    B(f"v_lshl_add_u32 v{vOut}, v{t2}, 4, v{t0}")
    B(f"v_add_u32 v{vOut}, s{sY}, v{vOut}")
    B(f"v_lshlrev_b32 v{t1}, 1, v{t1}")
    B(f"v_xor_b32 v{t3}, v{t2}, v{t1}")
    B(f"v_lshl_add_u32 v{vVdma}, v{t3}, 4, v{t0}")
    B(f"s_add_u32 s{sX}, s{sG}, s{sF}")
    B(f"v_add_u32 v{vVdma}, s{sX}, v{vVdma}")
    B(f"v_bfe_u32 v{t0}, v{vLane}, 1, 3")
    B(f"v_mul_u32_u24 v{t0}, 1056, v{t0}")
    B(f"v_and_b32 v{t2}, 1, v{vLane}")
    B(f"v_lshl_add_u32 v{t0}, v{t2}, 9, v{t0}")
    B(f"v_lshrrev_b32 v{t1}, 4, v{vLane}")
    B(f"v_xor_b32 v{t2}, v{t2}, v{t1}")
    B(f"v_lshl_add_u32 v{t0}, v{t2}, 4, v{t0}")
    B(f"v_bfe_u32 v{t2}, v{vLane}, 3, 1")
    B(f"v_mul_u32_u24 v{t2}, {VW - 128 - 4224}, v{t2}")
    B(f"v_add_u32 v{vA}, {VB}, v{t0}")
    B(f"v_add_u32 v{vA}, v{vA}, v{t2}")
    B(f"v_add_u32 v{vB}, {PB}, v{t0}")
    B(f"v_add_u32 v{vKrd}, s{sKm0[0]}, v{t0}")
    B(f"v_and_b32 v{t0}, 15, v{vLane}")
    B(f"v_lshlrev_b32 v{t0}, 4, v{t0}")
    B(f"v_add_u32 v{vSr}, {SC0}, v{t0}")
    B(f"v_lshrrev_b32 v{t2}, 5, v{vLane}")
    B(f"v_lshl_add_u32 v{t2}, v{t2}, 8, v{vSr}")
    B(f"s_lshl_b32 s{sX}, s{sW}, 2")
    B(f"v_add_u32 v{vSx}, s{sX}, v{t2}")
    B(f"v_mov_b32 v{vFlagA}, {FLAG}")
    B(f"v_mov_b32 v{vFlag}, 0")
    B(f"ds_write_b32 v{vFlagA}, v{vFlag}")
    B(f"s_mov_b32 s{sC}, {hex(f2u(math.log2(math.e) / 16.0))}")
    B(f"s_mov_b32 s{sTh}, {hex(f2u(cfg.thresh))}")
    B(f"s_mov_b32 s{sT}, 0")
    for b in range(1, 4): B(f"s_add_u32 s{sVm0[b]}, s{sVm0[0]}, {b*4096}")
    B(f"s_sub_u32 s{sV}, s8, {BIAS}"); B(f"s_subb_u32 s{sV+1}, s9, 0"); B(f"s_mov_b32 s{sV+2}, s{sK+2}"); B(f"s_mov_b32 s{sV+3}, 0x20000")
    if cfg.mask2:
        for p in range(16):
            B(f"s_xor_b32 s{sX}, s{sM}, {p*4096}"); B(f"s_add_u32 s{sVo(p)}, s{sX}, {BIAS - (p%4)*1024}")
    else:
        for hi in range(4):
            base = (hi >> 1) * 8 + (hi & 1) * 2
            B(f"s_xor_b32 s{sX}, s{sM}, {base*4096}")
            for lo in (0, 1, 4, 5):
                p = base + lo
                B(f"s_add_u32 s{sVo(p)}, s{sX}, {lo*4096 + BIAS - (p%4)*1024}")
    B(f"s_mov_b32 s{sO}, s10"); B(f"s_mov_b32 s{sO+1}, s11"); B(f"s_mov_b32 s{sO+2}, 12582912"); B(f"s_mov_b32 s{sO+3}, 0x20000")
    B(f"v_lshrrev_b32 v{t0}, 2, v{vLane}")
    B(f"v_lshlrev_b32 v{t0}, 7, v{t0}")
    B(f"v_bfe_u32 v{t2}, v{vLane}, 3, 2")
    B(f"v_lshl_add_u32 v{t0}, v{t2}, 5, v{t0}")
    B(f"v_and_b32 v{t2}, 3, v{vLane}")
    B(f"v_lshl_add_u32 v{t0}, v{t2}, 3, v{t0}")
    B(f"v_add_u32 v{vVrd[0]}, s{sVm0[0]}, v{t0}")
    for dt in range(1, 4): B(f"v_xor_b32 v{vVrd[dt]}, {dt*32}, v{vVrd[0]}")
    B(f"v_lshlrev_b32 v{t0}, 4, v{vLane}")
    B(f"v_add_u32 v{vPrd}, {PB}, v{t0}")
    B(f"s_mul_i32 s{sX}, s{sW}, 6144")
    B(f"v_add_u32 v{vPwr}, s{sX}, v{vPrd}")
    for i in range(96): B(f"v_mov_b32 v{i}, 0")
    for r in range(6): B(f"v_mov_b32 v{vL[r]}, 0")
    nz = len(U) // max(cfg.npre, 1) + 1
    k = 0
    for i in range(cfg.npre):
        e = min(len(U), (i + 1) * nz)
        while e < len(U) and U[e].text.startswith("s_subb"): e += 1
        P += U[k:e]; k = e
        P += flat(take())
    P += U[k:]
    P.append(W(lgkm=0))
    P += stamp(cfg, 4, 3)
    def q_read(r, s):
        tau, a = divmod(r, 2)
        base, off = (vB, a * 8448) if tau == 0 else (vA, 2 * a * VW + VW - (3 - tau) * 4224)
        return Op(f"ds_read_b128 {a4(aQ(r,s))}, v{base} offset:{off + s*64}", tag=("Qr", 0, r, s))
    def gather_max(tau):
        rd = [gather_reads(2*tau + k, X0 + 4 + 4*k, 0, "Mr") for k in range(2)]
        red = []
        for i in range(2):
            for k in range(2):
                b = X0 + 4 + 4 * k; r = 2 * tau + k
                if i == 0: red.append(Op(f"v_max3_f32 v{b}, v{b}, v{b+1}, v{b+2}", needs=[("Mr", 0, r)]))
                else: red.append(Op(f"v_max_f32 v{vMc[r]}, v{b}, v{b+3}"))
        return rd, red
    m0r, m1r, m2r = X0, X0 + 1, X0 + 2
    for tau in range(3):
        A("s_barrier", needs=[("Q", 0, tau, n) for n in range(4)] + ([("Mw", 0, tau - 1)] + [("Qr", 0, 2*tau - 2 + k, s) for k in range(2) for s in range(8)] if tau else []))
        if tau == 0: P += stamp(cfg, 1)
        P += stamp(cfg, 1 + 2 * tau, 1)
        if tau < 2: P += stamp(cfg, 5 + tau, 3)
        G = Gaps(33)
        order = [(2*tau + k, a, s) for a in range(2) for k in range(2) for s in range(8)]
        rds = []
        for u, (r, a, s) in enumerate(order):
            if tau == 0 and r == 0: rds.append((u, k_read(a, s, 1)))
            if a == 0: rds.append((u, q_read(r, s)))
        LA = 8 if cfg.pfree else 6
        inl = tau and (tau - 1) not in cfg.early
        if inl:
            rd, red = gather_max(tau - 1)
            P += rd
        P += [o for u, o in rds if u < LA]
        if inl: P += red
        for g in cfg.pgs:
            if not stream: break
            x = take()
            m, o = x[0]
            if m is not None: G.put_first(g - 1, m0op(m))
            G.put_mem(g, o)
            for y, _ in x[1:]: G.val[g].append(y)
        gi = 0
        for u, o in rds:
            if u < LA: continue
            while G.cost(gi) >= 8: gi += 1
            assert gi <= u - LA + 2, (tau, u, gi)
            G.put_mem(gi, o)
        tasks = []
        if cfg.pfree:
            for g0 in range(3, 24 if tau == 0 else 16, 4):
                G.put_first(g0, Need([o.tag for u, o in rds if g0 < u <= g0 + 4]), g0 - 1)
        if tau:
            la = {}
            if inl:
                qs = [(a, 2*tau - 2 + k) for k in range(2) for a in range(2)]
                tasks, la = softmax_tasks(qs, [0] * 4, {2*tau - 2: 0, 2*tau - 1: 2})
            if tau == 2:
                c1 = Task(Op(f"v_max3_f32 v{X0+12}, v{vTs[0]}, v{vTs[1]}, v{vTs[2]}"), [la[2]] if la else [], 0, 900)
                c2 = Task(Op(f"v_max_f32 v{X0+12}, v{X0+12}, v{vTs[3]}"), [c1] + ([la[3]] if la else []), 0, 901)
                c3 = Task(Op(f"v_cmp_nge_f32 vcc, s{sTh}, v{X0+12}"), [c2], 0, 902)
                tasks += [c1, c2, c3]
        mx = []
        for k, m in enumerate((m0r, m1r)):
            b = vS(0, 2*tau + k)
            x = Task(Op(f"v_max3_f32 v{m}, v{b}, v{b+1}, v{b+2}"), [], 8 * k + 11, -20 + k)
            y = Task(Op(f"v_max_f32 v{m}, v{m}, v{b+3}"), [x], 0, -18 + k)
            mx += [x, y]
        tailops = []
        st = red_pair(m0r, m1r, m2r, "v_max_f32")
        fin = [st[0][0], st[1][0], st[2][0], st[3][0], st[4][0], Op(f"v_mul_f32 v{m0r}, s{sC}, v{m0r}")]
        mw = Op(f"ds_write_b32 v{vSx}, v{m0r} offset:{tau*512}", tag=("Mw", 0, tau), cost=8)
        if tau < 2:
            prev = [mx[1], mx[3]]
            for i, o in enumerate(fin):
                t = Task(o, prev, [22, 23, 24, 26, 27, 28][i], -10 + i); mx.append(t); prev = [t]
        else:
            b = vS(1, 4)
            x = Task(Op(f"v_max3_f32 v{m0r}, v{m0r}, v{b}, v{b+1}"), [mx[1]], 27, -10)
            y = Task(Op(f"v_max3_f32 v{m0r}, v{m0r}, v{b+2}, v{b+3}"), [x], 27, -9)
            mx += [x, y]
            b = vS(1, 5)
            tailops = [Op(f"v_max3_f32 v{m1r}, v{m1r}, v{b}, v{b+1}"), Op(f"v_max3_f32 v{m1r}, v{m1r}, v{b+2}, v{b+3}"), Op("s_nop 1"),
                       fin[0], fin[1], fin[2], Op("s_nop 1"), fin[3], fin[4], fin[5], mw]
        G.cap = cfg.pcap
        G.schedule(tasks + mx, 32)
        if tau < 2: G.put_mem(mx[-1].gap + 1, mw)
        for u, (r, a, s) in enumerate(order):
            needs = ([("Kr", 1, a, s)] if tau == 0 and r == 0 else []) + ([("Qr", 0, r, s)] if a == 0 else [])
            A(mfma(v4(vS(a, r)), a4(SETS[a] + 4*s), a4(aQ(r, s)), "0" if s == 0 else v4(vS(a, r))), needs=needs)
            P += G.ops(u)
        P += stamp(cfg, 2 + 2 * tau, 1)
        if tau == 2:
            if cfg.klate: A("s_nop 7")
            else:
                for s in range(8): P.append(k_read(0, s, 2))
        P += G.ops(32)
        P += tailops
        if tau in cfg.early:
            A("s_barrier", needs=[("Mw", 0, tau)])
            rd, red = gather_max(tau)
            tk, _ = softmax_tasks([(a, 2*tau + k) for a in range(2) for k in range(2)], [0] * 4, {2*tau: 0, 2*tau + 1: 1})
            P += rd + red + linear(tk)
    A("s_cbranch_vccnz L_notify0")
    A("L_notified0:")
    P += stamp(cfg, 2)
    A("s_barrier", needs=[("Mw", 0, 2)] + [("Qr", 0, 4 + k, s) for k in range(2) for s in range(8)])
    rd, red = gather_max(2)
    P += rd
    A(f"ds_read_b32 v{vFlag}, v{vFlagA}", tag=("F", 0))
    tasks, _ = softmax_tasks([(a, 4 + k) for k in range(2) for a in range(2)], [0] * 4, {4: 0, 5: 2})
    st = red + [Op(f"v_cmp_ne_u32 vcc, 0, v{vFlag}", needs=[("F", 0)])] + linear(tasks)
    stream += late
    nd = len([x for x in stream if x[1] is not None])
    keep = st[-16:] if cfg.klate else []
    if cfg.klate: st = st[:-16]
    n = len(st) // max(nd, 1) + 1
    for i in range(nd):
        P += flat(take()) + st[i * n:(i + 1) * n]
    if not nd: P += st
    if cfg.klate:
        for s in range(8): P.append(k_read(0, s, 2))
    P += keep
    P.append(W(lgkm=0))
    A("s_cbranch_vccnz L_slow")
    P += stamp(cfg, 3)

    Lp = [Op(".p2align 6"), Op("L_loop:")] + body(cfg)
    if cfg.lstamps:
        Lp.append(Op("s_waitcnt lgkmcnt(0)", "salu"))
        Lp.append(Op(f"s_cmp_lg_u32 s{sT}, {cfg.lt + 1}"))
        Lp.append(Op("s_cbranch_scc1 L_nocopy"))
        for i in range(7):
            src = LST[i]
            Lp.append(Op(f"v_writelane_b32 v{vDbg}, s{src}, {i}"))
        Lp.append(Op("L_nocopy:"))
        Lp.append(Op(f"s_cmp_lt_u32 s{sT}, 6"))
    Lp += [Op("s_cbranch_vccnz L_slow"), Op("L_slow_ret:"), Op("s_cbranch_scc1 L_loop")]
    Lx = [Op(f"s_cmp_eq_u32 s{sT}, 6"), Op("s_cbranch_scc1 L_switch")]
    Sw = [Op("L_switch:"), Op(f"s_mov_b32 s{sK}, s{sV}"), Op(f"s_mov_b32 s{sK+1}, s{sV+1}"), Op(f"v_add_u32 v{vKdma}, s{sIv}, v{vVdma}")]
    Sw.append(Op(f"s_mov_b32 s{sIv}, 0x40000000"))
    sPb = [None, 79, 80, 81]
    vF0 = [X0 + 13, X0 + 14, X0 + 15, vA]
    Sw.append(Op(f"s_sub_u32 s{sX}, s{sKm0[0]}, s{sVm0[0]}"))
    Sw.append(Op(f"v_lshrrev_b32 v{vB}, 5, v{vLane}"))
    Sw.append(Op(f"v_lshl_add_u32 v{vB}, v{vB}, 5, s{sX}"))
    for u in range(4):
        Sw += [Op(f"s_add_u32 s{sY}, s{sW}, {u}"), Op(f"s_and_b32 s{sY}, s{sY}, 3")]
        if u: Sw.append(Op(f"s_mul_i32 s{sPb[u]}, s{sY}, 6144"))
        Sw += [Op(f"s_lshl_b32 s{sY}, s{sY}, 14"), Op(f"s_xor_b32 s{sY}, s{sY}, s{sM}")]
        for j in range(4):
            if cfg.mask2 or j == 2: Sw.append(Op(f"s_xor_b32 s{sX}, s{sY}, {j*4096}"))
            lo_ = 0 if cfg.mask2 else (j % 2) * 4096
            Sw.append(Op(f"s_add_u32 s{sKo(u,j)}, s{sX if (cfg.mask2 or j >= 2) else sY}, {lo_ + BIAS - 1056*j}"))
        Sw.append(Op(f"v_add_u32 v{vF0[u]}, v{vVrd[u]}, v{vB}"))
    Sw.append(Op("s_branch L_loop"))

    F = []; A = lambda t, **k: F.append(Op(t, **k))
    F += stamp(cfg, 4) + stamp(cfg, 1, 2)
    vOw, vOr = vKdma, vVdma
    vPa = lambda i: vS(0, 3) + 12 + i
    allK = [("K", 1, u, j) for u in range(4) for j in range(4)]
    def fv_read(i, dt, half):
        return Op(f"ds_read_b64_tr_b16 {a4(fV(i, dt) + 2*half, 2)}, v{vF0[dt]} offset:{i*4224 + half*2112}", tag=("Vr", 0, i, dt, half),
                  needs=[("K", 1, i, 2*half), ("K", 1, i, 2*half + 1)])
    def fp_read(i, r):
        return Op(f"ds_read_b128 {a4(fP(i, r))}, v{vPa(i)} offset:{r*1024}", tag=("Pr", 0, i, r))
    order = [(r, dt, 0) for dt in range(4) for r in range(6)]
    order += [(r, dt, i) for r in range(6) for dt in range(4) for i in (1, 2, 3)]
    NG = 96 + 40
    G = Gaps(NG)
    F += [fv_read(0, dt, h) for dt in range(4) for h in range(2)]
    for i in (1, 2, 3): A(f"v_add_u32 v{vPa(i)}, s{sPb[i]}, v{vPrd}")
    G.put_first(0, Need(allK))
    lo, lw = l_publish()
    F += lo[:6]
    FB = cfg.fbar
    for r in range(6): G.put_mem(cfg.fpw[r], p_write(r, 0))
    gl = [g for g in range(FB) if g not in cfg.fpw]
    for k in range(5):
        G.val[gl[k]] += lo[6 + 3 * k:9 + 3 * k]
    for k, o in enumerate(lw): G.put_mem(gl[5 + k], o)
    pub = [("Pw", 0, r) for r in range(6)] + [("Lw", 0, tau) for tau in range(3)]
    G.put_first(FB, Need(pub))
    G.put_mem(FB, Op("s_barrier", needs=pub))
    firstuse = {}
    for u, (r, dt, i) in enumerate(order):
        firstuse.setdefault(("Pr", 0, i, r), u)
        for h in range(2): firstuse.setdefault(("Vr", 0, i, dt, h), u)
    prs = [fp_read(i, r) for r in range(6) for i in (1, 2, 3)]
    lrs = [gather_reads(r, vS(0, 0) + 4*r, SC1 - SC0, "Lr") for r in range(6)]
    for k, o in enumerate(prs[:3] + lrs[:1]): G.put_mem(FB + (k + 1) // 2, o); o.gap = FB + (k + 1) // 2
    vr = sorted([fv_read(i, dt, h) for i in (1, 2, 3) for dt in range(4) for h in range(2)], key=lambda o: firstuse[o.tag])
    gi = 0
    for o in vr:
        while len(G.mem[gi]) >= 2 or any(x.kind in ("dsw", "bar") for x in G.mem[gi]): gi += 1
        assert gi <= firstuse[o.tag] - 4, (gi, o.tag)
        G.put_mem(gi, o)
    for r, o in enumerate(lrs): firstuse[o.tag] = 24 + 12 * r + 2
    rest = sorted(prs[3:] + lrs[1:], key=lambda o: firstuse[o.tag])
    gi = FB + 3
    for o in rest:
        g = max(gi, firstuse[o.tag] - 11)
        while G.cost(g) >= 4: g += 1
        G.put_mem(g, o); gi = g; o.gap = g
    for r in range(6): G.put_first(24 + 12 * r - 1, Need([("Pr", 0, i, r) for i in (1, 2, 3)]))
    setup = [f"v_and_b32 v{t0}, 15, v{vLane}", f"v_lshrrev_b32 v{t1}, 4, v{vLane}", f"v_mul_u32_u24 v{t0}, {OST}, v{t0}",
             f"v_lshrrev_b32 v{t2}, 3, v{vLane}", f"v_lshl_add_u32 v{t0}, v{t1}, 3, v{t0}", f"v_mul_u32_u24 v{t2}, {OST}, v{t2}",
             f"v_add_u32 v{vOw}, s{sVm0[0]}, v{t0}", f"v_and_b32 v{t1}, 7, v{vLane}", f"v_lshl_add_u32 v{t2}, v{t1}, 4, v{t2}",
             f"v_add_u32 v{vOr}, s{sVm0[0]}, v{t2}"]
    for k, x in enumerate(setup): G.val[FB - 3 + k].append(Op(x))
    tasks = []
    for k in range(12): G.put_first(2 + k, Op(f"s_mov_b32 s{sKo(0,0) + k}, {k * 4096}"), 0)
    rc = []
    for r in range(6):
        b = vS(0, 0) + 4 * r; lg = lrs[r].gap + 5; pr = 100 + (24 + 12 * r) * 10 - 60
        x = Task(Op(f"v_add_f32 v{b}, v{b}, v{b+1}", needs=[("Lr", 0, r)]), [], lg, pr)
        y = Task(Op(f"v_add_f32 v{b+2}, v{b+2}, v{b+3}", needs=[("Lr", 0, r)]), [], lg, pr + 1)
        z = Task(Op(f"v_add_f32 v{b}, v{b}, v{b+2}"), [x, y], lg, pr + 2)
        w = Task(Op(f"v_rcp_f32 v{b if cfg.pkm else vL[r]}, v{b}"), [z], lg, pr + 3)
        tasks += [x, y, z, w]; rc.append(w)
    lastuse = {}
    for u, (r, dt, beta) in enumerate(order): lastuse[(r, dt)] = u
    memops = []
    if cfg.pkm:
        for r in range(6):
            u = max(lastuse[(r, dt)] for dt in range(4)); e = u + 3
            if e > 95: e = 97
            rb_ = vS(0, 0) + 4 * r
            batch = Task(Op("s_nop 0", cost=4), [rc[r]], e, 100 + u * 10)
            batch.pk8 = [Op(f"v_pk_mul_f32 {v4(vO(0, r) + 2*i, 2)}, {v4(vO(0, r) + 2*i, 2)}, {v4(rb_, 2)} op_sel_hi:[1,0]") for i in range(8)]
            tasks.append(batch)
            for dt in range(4):
                b = vO(dt, r)
                cv = [Task(Op(f"v_cvt_pk_bf16_f32 v{b+i}, v{b+2*i}, v{b+2*i+1}"), [batch], e, 100 + u * 10 + 1 + 2 * dt + i) for i in range(2)]
                cv[1].deps.append(cv[0])
                tasks += cv
                memops.append((r, dt, cv))
    else:
        for (r, dt), u in sorted(lastuse.items(), key=lambda x: x[1]):
            b = vO(dt, r); e = u + 3
            if e > 95: e = 97
            mu = [Task(Op(f"v_mul_f32 v{b+i}, v{b+i}, v{vL[r]}"), [rc[r]], e, 100 + u * 10 + i) for i in range(4)]
            cv = [Task(Op(f"v_cvt_pk_bf16_f32 v{b+i}, v{b+2*i}, v{b+2*i+1}"), mu[:2*i+2], e, 100 + u * 10 + 14 + i) for i in range(2)]
            cv[1].deps.append(cv[0])
            tasks += mu + cv
            memops.append((r, dt, cv))
    G.cap = cfg.fcap
    G.schedule(tasks, NG - 1, NG)
    for t in tasks:
        if hasattr(t, "pk8"):
            G.val[t.gap].remove(t.op); G.tail[t.gap] += t.pk8
    allV = [("V", 0, p) for p in range(8 + cfg.drot)]
    lastw = {}
    for r, dt, cv in memops:
        g = cv[1].gap + 1
        G.put_mem(g, Op(f"ds_write_b64 v{vOw}, {v4(vO(dt, r), 2)} offset:{r*16*OST + dt*32}", tag=("Ow", 0, r, dt), needs=allV, cost=12))
        lastw[r] = max(lastw.get(r, 0), g)
    for r in range(6):
        g = lastw[r] + 1
        rb = vPf(0, 0) + 8 * (r % 3)
        for i in range(2):
            G.put_mem(g, Op(f"ds_read_b128 {v4(rb + 4*i)}, v{vOr} offset:{(r*16 + 8*i)*OST}", tag=("Or", 0, r, i)))
            G.put_mem(min(g + 5 + i, G.n - 1), Op(sq(f"buffer_store_dwordx4 {v4(rb + 4*i)}, v{vOut}, {s4(sO)}, s{sKo(0,0) + r*2 + i} offen {cfg.opol}"), needs=[("Or", 0, r, i)]))
    for u, (r, dt, beta) in enumerate(order):
        A(mfma(v4(vO(dt, r)), a4(fV(beta, dt)), a4(fP(beta, r)) if beta else v4(vPk(r)), v4(vO(dt, r))),
          needs=([("Pr", 0, beta, r)] if beta else []) + [("Vr", 0, beta, dt, 0), ("Vr", 0, beta, dt, 1)])
        if u in (0, 24, 48): F += stamp(cfg, {0: 2, 24: 3, 48: 4}[u], 2)
        F += G.ops(u)
    F += stamp(cfg, 5, 2)
    F += G.ops(96)
    A("s_nop 7")
    for g in range(97, G.n): F += G.ops(g)
    if cfg.verbose: print("final costs", [G.cost(g) for g in range(G.n)], file=sys.stderr)
    if cfg.stamps:
        F += stamp(cfg, 5) + stamp(cfg, 6, 2)
        F.append(W(vm=0))
        F += stamp(cfg, 6)
        A("s_memrealtime s[6:7]")
        F.append(W(lgkm=0))
        A(f"s_mov_b32 s{sWS+2}, {256 if cfg.dbg else 0x1000000}"); A(f"s_mov_b32 s{sWS+3}, 0x20000")
        A("v_mov_b32 v0, s34"); A("v_mov_b32 v1, s6")
        if cfg.lstamps:
            for i in range(7): A(f"v_readlane_b32 s{sSt + 2*i}, v{vDbg}, {i}")
            A("s_nop 3")
        for i in range(1, 7):
            A(f"s_sub_u32 s{sX}, s{sSt+2*i}, s{sSt}")
            A(f"v_mov_b32 v{1+i}, s{sX}")
        if cfg.dbg:
            A(f"s_mov_b32 s{sX}, 4096"); A("s_cmp_eq_u32 s2, 0"); A(f"s_cselect_b32 s{sX}, 0, s{sX}")
            A("s_cmp_eq_u32 s2, 200"); A(f"s_cselect_b32 s{sX}, 32, s{sX}")
            A(f"s_lshl_b32 s{sY}, s{sW}, 12"); A(f"s_add_u32 s{sX}, s{sX}, s{sY}")
        else:
            A(f"s_lshl_b32 s{sX}, s2, 7"); A(f"s_lshl_b32 s{sY}, s{sW}, 5"); A(f"s_add_u32 s{sX}, s{sX}, s{sY}")
        A(f"v_mov_b32 v8, s{sX}")
        A(f"v_cmp_eq_u32 vcc, 0, v{vLane}")
        A("s_and_saveexec_b64 s[4:5], vcc")
        A(f"buffer_store_dwordx4 v[0:3], v8, {s4(sWS)}, 0 offen")
        A(f"buffer_store_dwordx4 v[4:7], v8, {s4(sWS)}, 0 offen offset:16")
    A("L_end:")
    A("s_endpgm")

    def notify(sfx):
        return [Op(f"L_notify{sfx}:"), Op(f"v_mov_b32 v{vFlag}, 1"), Op(f"ds_write_b32 v{vFlagA}, v{vFlag}"), W(lgkm=0), Op(f"s_branch L_notified{sfx}")]
    def strip(ops):
        for o in ops: o.needs = []; o.tag = None
        return ops
    S = [Op("L_slow:"), W(lgkm=0), Op("s_barrier"), Op("s_nop 7")]
    for tau in range(3): S += strip(max_local(tau, False, X0))
    S += [W(lgkm=0), Op("s_barrier")]
    S.append(Op(f"v_mov_b32 v{vFlag}, 0"))
    S.append(Op(f"ds_write_b32 v{vFlagA}, v{vFlag}"))
    gb = vPf(0, 0)
    for r in range(6): S += strip([gather_reads(r, gb + 4*r, 0, "Mr")])
    S.append(W(lgkm=0))
    for r in range(6): S.append(Op(f"v_max3_f32 v{gb+4*r}, v{gb+4*r}, v{gb+4*r+1}, v{gb+4*r+2}"))
    for r in range(6): S.append(Op(f"v_max3_f32 v{gb+4*r}, v{gb+4*r}, v{gb+4*r+3}, v{vMc[r]}"))
    for r in range(6): S.append(Op(f"v_sub_f32 v{X0+r}, v{vMc[r]}, v{gb+4*r}"))
    for r in range(6): S.append(Op(f"v_exp_f32 v{X0+r}, v{X0+r}"))
    for r in range(6): S.append(Op(f"v_mov_b32 v{vMc[r]}, v{gb+4*r}"))
    for r in range(6): S.append(Op(f"v_mul_f32 v{vL[r]}, v{vL[r]}, v{X0+r}"))
    for r in range(6):
        for dt in range(4):
            for i in range(4): S.append(Op(f"v_mul_f32 v{vO(dt,r)+i}, v{vO(dt,r)+i}, v{X0+r}"))
    tasks, _ = softmax_tasks([(a, r) for r in range(6) for a in range(2)], [0] * 12, {r: 2 * r for r in range(6)})
    S += linear(tasks)
    S += [Op(f"s_cmp_lt_u32 s{sT}, 6"), Op("s_branch L_slow_ret")]

    trace = [(o, -1) for o in P]
    for t in range(7): trace += [(o, t) for o in Lp]
    trace += [(o, 7) for o in F]
    derive_waits(trace)
    errs = check_hazards(P + Lp + Lp + Lx + Sw + Lp + Lx + F) + check_hazards(Lp + S + Lp) + check_hazards(Lp + S + Lx + F) + check_hazards(P + S + Lp)
    for e in sorted(set(errs)): print("HAZARD", e, file=sys.stderr)
    assert not errs
    if cfg.abl:
        def keep(o):
            t = o.tag[0] if o.tag else None
            drop = (("p" in cfg.abl and t == "Pr") or ("v" in cfg.abl and t == "Vr") or ("k" in cfg.abl and t == "Kr") or ("w" in cfg.abl and t == "Pw")
                    or ("s" in cfg.abl and o.text.split()[0] in ("v_fma_f32", "v_exp_f32", "v_cvt_pk_bf16_f32", "v_add_f32"))
                    or ("e" in cfg.abl and o.text.split()[0] == "v_exp_f32")
                    or ("d" in cfg.abl and o.kind == "dma") or ("h" in cfg.abl and t == "V") or ("b" in cfg.abl and o.kind == "bar")
                    or ("q" in cfg.abl and t == "Pr" and o.tag[2] == 3))
            if drop and o.wait:
                o.kind = "pseudo"; return True
            return not drop
        Lp = [o for o in Lp if keep(o)]
    hdr = [l for l in open("standalone__gqa_softmax__near_ridge.s.ref").read().splitlines() if l.startswith(";") and "@launch grid" not in l] if cfg.refhdr else []
    L = header(256, 256, LDS_TOTAL, hdr)
    L += emit(P) + emit(Lp) + emit(Lx) + emit(F) + emit(Sw) + ["L_code_end:"] + emit(notify("")) + emit(notify("0")) + emit(S)
    L += footer(512, 256)
    return "\n".join(L) + "\n"

if __name__ == "__main__":
    cfg = Cfg()
    out = sys.argv[1]
    for a in sys.argv[2:]:
        k, v = a.split("=", 1)
        if not isinstance(getattr(Cfg, k), str): v = eval(v)
        setattr(cfg, k, v)
    open(out, "w").write(build(cfg))
```

```python
import sys, math, struct
from fw import *
from asmlib import header, footer, NAME

def f2u(x): return struct.unpack("<I", struct.pack("<f", x))[0]

class Cfg:
    kpol = ""; vpol = ""; qpol = "nt"; opol = "nt"
    stamps = False; dbg = False; lstamps = None; lt = 3; spin_at = -1; spin_us = 0; rt = 0; smode = 0
    thresh = 65536.0
    refhdr = False
    cpf = 1
    verbose = 0
    mask = 1
    ga = 184
    gb = 74
    pwg = [0, 5, 10, 15, 20, 25]
    dpos = [b + st * i for b, st in ((30, 4), (62, 5), (112, 5), (158, 4)) for i in range(8)]
    drot = 0
    rd0 = [3, 4, 4, 31]
    rdspan = [8, 38, 38, 8]
    ovf0 = 11
    fcap = 12
    mask2 = 0
    klate = 1
    abl = ""
    pkm = 0
    flate = 13
    seqs = None
    early = []
    pfree = 1
    nofma = 0
    fbar = 19
    fpw = [0, 3, 6, 9, 12, 15]
    npre = 12
    pgs = [1, 5, 9, 13, 18, 22, 26, 30]
    pcap = 12

KW = 16896; KB = 0
VB = 4 * KW; VW = 16384
PB = VB + 4 * VW
SC0 = PB + 24576
SC1 = SC0 + 2048
LDS_TOTAL = SC1 + 2048
FLAG = 1024
KIMM = [0, 1056, 2112, 3168]
def q_quarter_base(tau, q):
    if tau == 0: return PB + q * 4224
    return VB + q * VW + VW - (3 - tau) * 4224
OST = 144
PL = 4224

def vO(dt, r): return (r * 4 + dt) * 4
def vS(a, r): return 96 + (r * 2 + a) * 4
def vPk(r): return 144 + 4 * r
def vPf(slot, b): return 168 + slot * 8 + 4 * b
vMc = list(range(192, 198)); vL = list(range(198, 204)); vTs = list(range(204, 210))
vKrd, vPrd, vPwr, vKdma, vVdma, vSx, vSr, vFlagA, vFlag, vOut, vLane, vA, vB = range(210, 223)
vVrd = [224, 225, 226, 227]
vDbg = 223
T0 = 228; NT = 12
X0 = 240
def aQ(r, s): return (r * 8 + s) * 4
SETS = [192, 224]
sQ, sK, sV, sO = 12, 16, 20, 24
sW, sG, sU, sT, sC, sTh = 28, 29, 30, 31, 32, 33
sKm0 = [36, 37, 38, 39]; sVm0 = [40, 41, 42, 43]
def sKo(q, n): return 44 + q * 4 + n
def sVo(p): return 60 + p
sX, sY, sZ = 76, 77, 78
sKs, sVs, sKd, sVd, sM = 79, 80, 81, 82, 83
BIAS = 4096
LST = [8, 10, 12, 14, 96, 98, 100]
sTk, sTv, sIk, sIv = 4, 5, 6, 7
def nxt(t, d): return [Op(f"s_bfe_i32 s{d}, s{t}, 0x40000"), Op(f"s_lshl_b32 s{d}, s{d}, 16"), Op(f"s_lshr_b32 s{t}, s{t}, 4")]
sMq = 33
sWS = 84; sSt = 88

def v4(b, n=4): return f"v[{b}:{b+n-1}]"
def a4(b, n=4): return f"a[{b}:{b+n-1}]"
def s4(b): return f"s[{b}:{b+3}]"
def sq(t): return " ".join(t.split())
def mfma(d, a, b, c): return f"v_mfma_f32_16x16x32_bf16 {d}, {a}, {b}, {c}"

def k_read(a, s, toff):
    return Op(f"ds_read_b128 {a4(SETS[a] + 4*s)}, v{vKrd} offset:{a*8448 + s*64}", tag=("Kr", toff, a, s),
              needs=[("K", toff, 2*a + u, j) for u in range(2) for j in range(4)])
def k_dma(cfg, q, n, toff, needs=()):
    return Op(sq(f"buffer_load_dwordx4 v{vKdma}, {s4(sK)}, s{sKo(q,n)} offen offset:{KIMM[n]} {cfg.kpol} lds"), tag=("K", toff, q, n), needs=needs)
def v_dma(cfg, p, toff, needs=()):
    return Op(sq(f"buffer_load_dwordx4 v{vVdma}, {s4(sV)}, s{sVo(p)} offen offset:{(p%4)*1024} {cfg.vpol} lds"), tag=("V", toff, p), needs=needs)
def v_read(dstbase, beta, dt, half, toff):
    p = 4 * beta + 2 * half
    return Op(f"ds_read_b64_tr_b16 {a4(dstbase + 2*half, 2)}, v{vVrd[dt]} offset:{p*1024}", tag=("Vr", toff, beta, dt, half),
              needs=[("V", toff, p), ("V", toff, p + 1)])
def p_read(dst, beta, r, toff):
    return Op(f"ds_read_b128 {dst}, v{vPrd} offset:{(beta*6 + r)*1024}", tag=("Pr", toff, beta, r))
def p_write(r, toff):
    return Op(f"ds_write_b128 v{vPwr}, {v4(vPk(r))} offset:{r*1024}", tag=("Pw", toff, r))

NOFMA = 'nofma=1' in sys.argv
class Task:
    def __init__(self, op, deps=(), earliest=0, prio=0):
        self.op = op; self.deps = list(deps); self.earliest = earliest; self.prio = prio; self.gap = None

def softmax_tasks(quads, earliest, first_quad_of):
    tasks = []; fm = []; ex = []; user = []
    last_add = {}
    e = 0
    for qi, (a, r) in enumerate(quads):
        for i in range(4):
            t = T0 + e % NT
            deps = user[e - NT] if e >= NT else []
            if NOFMA and len(quads) == 12 and earliest[0]:
                x = Task(Op(f"v_exp_f32 v{t}, v{vS(a,r)+i}"), deps, earliest[qi], e * 4 + 5)
                ex.append(x); user.append([]); tasks.append(x)
            else:
                f = Task(Op(f"v_fma_f32 v{t}, v{vS(a,r)+i}, s{sC}, -v{vMc[r]}"), deps, earliest[qi], e * 4)
                x = Task(Op(f"v_exp_f32 v{t}, v{t}"), [f], 0, e * 4 + 5)
                fm.append(f); ex.append(x); user.append([])
                tasks += [f, x]
            first = first_quad_of[r] == qi
            if first and i == 0: pass
            else:
                if first and i == 1:
                    ad = Task(Op(f"v_add_f32 v{vTs[r]}, v{T0 + (e-1) % NT}, v{t}"), [ex[e - 1], x], 0, e * 4 + 10)
                    user[e - 1].append(ad)
                    ad.first_ts = r
                else:
                    ad = Task(Op(f"v_add_f32 v{vTs[r]}, v{vTs[r]}, v{t}"), [x, last_add[r]], 0, e * 4 + 10)
                last_add[r] = ad; user[e].append(ad); tasks.append(ad)
            if i % 2 == 1:
                c = Task(Op(f"v_cvt_pk_bf16_f32 v{vPk(r) + 2*a + i//2}, v{T0 + (e-1) % NT}, v{t}"), [ex[e - 1], x], 0, e * 4 + 11)
                c.pk = (r, 2 * a + i // 2)
                user[e - 1].append(c); user[e].append(c); tasks.append(c)
            e += 1
    return tasks, last_add

def linear(tasks):
    return [t.op for t in sorted(tasks, key=lambda t: t.prio)]

class Gaps:
    def __init__(self, n, cap=8):
        self.n = n; self.cap = cap
        self.first = [None] * n; self.mem = [[] for _ in range(n)]; self.val = [[] for _ in range(n)]; self.tail = [[] for _ in range(n)]
    def cost(self, g): return sum(o.cost for o in self.mem[g] + self.val[g] + self.tail[g])
    def put_first(self, g, op, lo=None):
        lo = g if lo is None else lo
        for x in range(g, lo - 1, -1):
            if self.first[x] is None:
                self.first[x] = op; return x
            if op.kind == "pseudo" and self.first[x].kind == "pseudo":
                self.first[x].needs += op.needs; return x
        raise ValueError(f"no free first slot near {g} for {op.text}")
    def put_mem(self, g, op): self.mem[g].append(op)
    def schedule(self, tasks, deadline, ovf0=0):
        todo = sorted(tasks, key=lambda t: t.prio)
        for g in range(self.n):
            room = self.cap - self.cost(g)
            if g < ovf0: pass
            elif g < deadline:
                rem = sum(t.op.cost for t in todo)
                capleft = sum(max(0, self.cap - self.cost(x)) for x in range(g, deadline))
                if rem > capleft - 12: room += 4
                if rem > capleft + 2 * (deadline - g): room += 4
            else: room = 1000
            while True:
                ready = [t for t in todo if t.earliest <= g and all(d.gap is not None and (d.gap < g or g >= deadline) for d in t.deps) and t.op.cost <= room]
                if not ready: break
                big = [t for t in ready if t.op.cost == 8]
                t = big[0] if big and big[0].prio <= ready[0].prio + 40 else ready[0]
                t.gap = g; self.val[g].append(t.op); room -= t.op.cost; todo.remove(t)
        assert not todo, [t.op.text for t in todo]
    def ops(self, g):
        return ([self.first[g]] if self.first[g] else []) + self.mem[g] + self.val[g] + self.tail[g]

def red_pair(x0, x1, t, op):
    return [[Op(f"v_permlane32_swap_b32 v{x0}, v{x1}")], [Op(f"{op} v{x0}, v{x0}, v{x1}")], [Op(f"v_mov_b32 v{t}, v{x0}")],
            [Op(f"v_permlane16_swap_b32 v{x0}, v{t}")], [Op(f"{op} v{x0}, v{x0}, v{t}")]]

def max_local(tau, first, base):
    o = []
    m = [base, base + 1]
    for i in range(4):
        for k in range(2):
            r = 2 * tau + k; b = vS(0, r)
            if i == 0: o.append(Op(f"v_max3_f32 v{m[k]}, v{b}, v{b+1}, v{b+2}"))
            elif i < 3: o.append(Op(f"v_max3_f32 v{m[k]}, v{m[k]}, v{b+2*i+1}, v{b+2*i+2}"))
            else: o.append(Op(f"v_max_f32 v{m[k]}, v{m[k]}, v{b+7}"))
    st = red_pair(m[0], m[1], base + 2, "v_max_f32")
    o += [Op("s_nop 1")] + st[0] + st[1] + st[2] + [Op("s_nop 1")] + st[3] + st[4]
    o.append(Op(f"v_mul_f32 v{m[0]}, s{sC}, v{m[0]}"))
    o.append(Op(f"ds_write_b32 v{vSx}, v{m[0]} offset:{tau*512}", tag=("Mw", 0, tau), cost=8))
    return o
def gather_reads(r, dst, off, tag):
    return Op(f"ds_read_b128 {v4(dst)}, v{vSr} offset:{off + r*256}", tag=(tag, 0, r))

def stamp(cfg, i, mode=0):
    if not cfg.stamps or (i and mode != cfg.smode): return []
    o = [Op(f"{'s_memrealtime' if cfg.rt else 's_memtime'} s[{sSt + 2*i}:{sSt + 2*i + 1}]")]
    if cfg.spin_at == i:
        o += [Op("s_waitcnt lgkmcnt(0)", "salu"), Op(f"L_spin{i}_{id(o)}:"), Op("s_sleep 2"), Op("s_memrealtime s[86:87]"), Op("s_waitcnt lgkmcnt(0)", "salu"),
              Op("s_sub_u32 s86, s86, s34"), Op(f"s_cmp_lt_u32 s86, {int(cfg.spin_us*100)}"), Op(f"s_cbranch_scc1 L_spin{i}_{id(o)}")]
    return o

def fV(beta, dt): return (dt * 4 + beta) * 4
def fP(beta, r): return 64 + (r * 4 + beta) * 4
vPlw, vPlr = vA, vB
def pl_write(r): return Op(f"ds_write_b128 v{vPlw}, {v4(vPk(r))} offset:{r*1024}", tag=("Plw", 0, r))
def pl_read(beta, r, toff): return Op(f"ds_read_b128 {a4(fP(beta, r))}, v{vPlr} offset:{beta*KW + r*1024}", tag=("Plr", toff, beta, r))
def l_publish():
    o = []
    for r in range(6): o.append(Op(f"v_add_f32 v{X0 + r}, v{vL[r]}, v{vTs[r]}"))
    sts = [red_pair(X0 + 2*tau, X0 + 2*tau + 1, X0 + 6 + tau, "v_add_f32") for tau in range(3)]
    for i in range(5):
        for tau in range(3): o += sts[tau][i]
    w = [Op(f"ds_write_b32 v{vSx}, v{X0 + 2*tau} offset:{SC1 - SC0 + tau*512}", tag=("Lw", 0, tau), cost=8) for tau in range(3)]
    return o, w

def dma_plan(cfg):
    seq = [(c, i) for c in (2, 3, 0, 1) for i in range(8)]
    plan = []
    for k in range(32):
        j = k + cfg.drot
        c, i = seq[j % 32]
        wrap = 1 if ((c in (2, 3) and j < 32) or j < 0) else 0
        plan.append((c, i, wrap))
    return plan

def body(cfg):
    sfx = ""
    G = Gaps(192)
    MF = []
    for a in range(2):
        for r in range(6):
            for s in range(8):
                MF.append(Op(mfma(v4(vS(a, r)), a4(SETS[a] + 4*s), a4(aQ(r, s)), "0" if s == 0 else v4(vS(a, r))),
                             needs=[("Kr", 1, a, s)] if r == 0 else []))
    for hb in range(2):
        for r in range(6):
            k = 6 * hb + r
            for dt in range(4):
                for b in range(2):
                    beta = 2 * hb + b
                    n = [("Pr", 0, beta, r)] if dt == 0 else []
                    if r == 0: n += [("Vr", 0, beta, dt, 0), ("Vr", 0, beta, dt, 1)]
                    MF.append(Op(mfma(v4(vO(dt, r)), a4(SETS[hb] + 4*(2*dt + b)), v4(vPf(k % 3, b)), v4(vO(dt, r))), needs=n))
    GA = cfg.ga; GB = cfg.gb
    pwg = cfg.pwg
    for r in range(6): G.put_mem(pwg[r], p_write(r, 0))
    G.put_mem(GB, Op("s_barrier", needs=[("Pw", 0, r) for r in range(6)]))
    G.put_first(GB, Need([("Pw", 0, r) for r in range(6)]))
    G.put_mem(GA, Op("s_barrier", needs=[("Pr", 0, 2, 5), ("Pr", 0, 3, 5)]))
    G.put_mem(GA + 1, Op(f"ds_read_b32 v{vFlag}, v{vFlagA}", tag=("F", 0)))
    def free_at(g, lim=0):
        while G.cost(g) > lim: g += 1
        return g
    def chunk_dma(c, i, wrap):
        if c in (0, 3):
            a = 1 if c == 0 else 0; toff = (1 if c == 0 else 2) - wrap; u, j = 2*a + i // 4, i % 4
            rd = [("Kr", toff, a, s) for s in range(8)]
            return (sKm0[u] if j == 0 else None), k_dma(cfg, u, j, toff + 1, needs=rd)
        hb = c - 1; p = 8 * hb + i; toff = -wrap
        rd = [("Vr", toff, p // 4, dt, (p % 4) // 2) for dt in range(4)]
        return (sVm0[p // 4] if p % 4 == 0 else None), v_dma(cfg, p, toff + 1, needs=rd)
    lastd = {}
    rd0 = list(cfg.rd0); rdspan = list(cfg.rdspan)
    prevg = -1
    for k, (c, i, wrap) in enumerate(dma_plan(cfg)):
        g = free_at(max(cfg.dpos[k], prevg + 2))
        m, o = chunk_dma(c, i, wrap)
        if k == 0 and m is None: m = sVm0[(8 * (c - 1) + i) // 4]
        if m is not None: G.put_first(g - 1, Op(f"s_mov_b32 m0, s{m}"), prevg + 1)
        G.put_mem(g, o); prevg = g
        if i == 7: lastd[c] = g
    for k in range(12):
        hb, r = divmod(k, 6)
        g = 96 + 8 * (k - 2)
        for b in range(2):
            g = free_at(g); G.put_mem(g, p_read(v4(vPf(k % 3, b)), 2*hb + b, r, 0)); g += 1
        assert g <= 96 + 8 * k - 6, (k, g)
        G.put_first(96 + 8 * k - 1, Need([("Pr", 0, 2*hb + b, r) for b in range(2)]), 96 + 8 * k - 4)
    for c in range(4):
        if c in (0, 3):
            a = 1 if c == 0 else 0; toff = 1 if c == 0 else 2
            rds = [[k_read(a, 2*q, toff), k_read(a, 2*q + 1, toff)] for q in range(4)]
        else:
            hb = c - 1
            rds = [[v_read(SETS[hb] + 4*(2*dt + j // 2), 2*hb + j // 2, dt, j % 2, 0) for dt in range(4)] for j in range(4)]
        for j in range(4):
            g = 48 * c + rd0[c] + (j * rdspan[c]) // 4
            for x, o in enumerate(rds[j]):
                dbl = False
                g = free_at(g, 4 if dbl else 0)
                if x == 0: G.put_first(g, Need(list(o.needs)), g - 3)
                G.put_mem(g, o)
                if not dbl: g += 1
                elif G.cost(g) >= 8: g += 2
            assert g <= 48 * c + 44, (c, j, g)
        G.put_first(48 * c + 47, Need([o.tag for rr in rds for o in rr]), 48 * c + 45)
    quads = [(a, r) for a in range(2) for r in range(6)]
    tasks, last_add = softmax_tasks(quads, [8 * i + 11 for i in range(12)], {r: r for r in range(6)})
    ladd = [Task(Op(f"v_add_f32 v{vL[r]}, v{vL[r]}, v{vTs[r]}"), [], 0, -100 + r) for r in range(6)]
    for t in tasks:
        if hasattr(t, "first_ts"): t.deps.append(ladd[t.first_ts])
        if hasattr(t, "pk"): t.earliest = max(t.earliest, pwg[t.pk[0]] + 1)
    tasks += ladd
    c1 = Task(Op(f"v_max3_f32 v{X0+12}, v{vTs[0]}, v{vTs[1]}, v{vTs[2]}"), [last_add[r] for r in range(3)], 0, 150)
    c2 = Task(Op(f"v_max3_f32 v{X0+12}, v{X0+12}, v{vTs[3]}, v{vTs[4]}"), [c1, last_add[3], last_add[4]], 0, 190)
    c3 = Task(Op(f"v_max_f32 v{X0+12}, v{X0+12}, v{vTs[5]}"), [c2, last_add[5]], 0, 1000)
    c4 = Task(Op(f"v_cmp_nge_f32 vcc, s{sTh}, v{X0+12}"), [c3], 0, 1001)
    tasks += [c1, c2, c3, c4]
    for c, v, d in ((0, vKdma, sIk), (2, vVdma, sIv)):
        assert lastd[c] < 191
        G.val[lastd[c] + 1].append(Op(f"v_add_u32 v{v}, s{d}, v{v}"))
    g = max(lastd[2] + 3, 56)
    for o in (nxt(sTv, sIv) + nxt(sTk, sIk) if cfg.seqs else []):
        while G.first[g] is not None: g += 1
        G.first[g] = o; g += 1
    assert g < min(lastd[0], 140)
    G.schedule(tasks, GA - 3, cfg.ovf0)
    gbr = c4.gap + 2
    while G.first[gbr] is not None: gbr += 1
    assert gbr <= GA, (c4.gap, gbr)
    G.first[gbr] = Op(f"s_cbranch_vccnz L_notify{sfx}")
    G.mem[gbr].insert(0, Op(f"L_notified{sfx}:"))
    G.put_first(149, Op(f"s_add_u32 s{sT}, s{sT}, 1"), 146)
    G.put_first(156, Op(f"s_cmp_lt_u32 s{sT}, 6"), 152)
    G.put_first(189, Need([("F", 0)]))
    G.val[189].append(Op(f"v_cmp_ne_u32 vcc, 0, v{vFlag}", needs=[("F", 0)]))
    costs = [G.cost(g) for g in range(192)]
    if cfg.verbose: print("loop est cycles", sum(max(16, 8 + c) for c in costs), costs, file=sys.stderr)
    L = []
    for g in range(192):
        L.append(MF[g])
        if cfg.lstamps and g in cfg.lstamps:
            i = cfg.lstamps.index(g)
            L.append(Op(f"s_memtime s[{LST[i]}:{LST[i] + 1}]"))
        L += G.ops(g)
    return L

DOC = """
;
"""

def build(cfg):
    P = []; A = lambda t, **k: P.append(Op(t, **k))
    sQo = [79, 80, 81, 82]
    vQd = X0 + 15
    t0, t1, t2, t3 = T0, T0 + 1, T0 + 2, T0 + 3
    A("s_cmp_ge_u32 s2, 256"); A("s_cbranch_scc1 L_end")
    if cfg.stamps:
        A("s_memrealtime s[34:35]")
        P += stamp(cfg, 0)
        A(f"s_load_dwordx2 s[{sWS}:{sWS+1}], s[0:1], {32 if cfg.dbg else 40}")
    A("s_load_dwordx8 s[4:11], s[0:1], 0")
    if cfg.cpf:
        A(f"s_getpc_b64 s[{sX}:{sX+1}]")
        A("L_pc:")
        A(f"v_lshlrev_b32 v{X0}, 7, v0")
        A(f"v_min_u32 v{X0}, L_code_end - L_pc - 4, v{X0}")
        A(f"v_mov_b32 v{X0+1}, s{sX+1}")
        A(f"v_add_co_u32 v{X0}, vcc, s{sX}, v{X0}")
        A(f"v_and_b32 v{vLane}, 63, v0")
        A(f"v_lshrrev_b32 v{vA}, 6, v0")
        A(f"v_addc_co_u32 v{X0+1}, vcc, 0, v{X0+1}, vcc")
        A(f"global_load_dword v{vDbg}, v[{X0}:{X0+1}], off")
    else:
        A(f"v_and_b32 v{vLane}, 63, v0")
        A(f"v_lshrrev_b32 v{vA}, 6, v0")
        A("s_nop 0")
    A(f"v_readfirstlane_b32 s{sW}, v{vA}")
    A(f"s_and_b32 s{sU}, s2, 7"); A(f"s_lshl_b32 s{sU}, s{sU}, 5"); A(f"s_lshr_b32 s{sX}, s2, 3"); A(f"s_add_u32 s{sU}, s{sU}, s{sX}")
    A(f"v_lshrrev_b32 v{t1}, 5, v{vLane}")
    A(f"v_xor_b32 v{t1}, v{t1}, v{vLane}")
    A(f"v_lshlrev_b32 v{vKdma}, 4, v{t1}")
    A(f"s_mul_i32 s{sY}, s{sU}, 49152")
    A(f"s_lshl_b32 s{sX}, s{sW}, 12")
    A(f"s_add_u32 s{sX}, s{sY}, s{sX}")
    A(f"v_add_u32 v{vQd}, s{sX}, v{vKdma}")
    A(f"s_movk_i32 s{sQo[0]}, 96")
    A(f"s_mul_i32 s{sX}, s{sW}, 4224")
    A(f"s_add_u32 m0, s{sX}, {PB}")
    A(f"s_mov_b32 s{sQ+2}, {12582912 + 96}"); A(f"s_mov_b32 s{sQ+3}, 0x20000")
    A(f"s_lshl_b32 s{sKm0[0]}, s{sX}, 2")
    A(f"s_lshr_b32 s{sZ}, s{sU}, 2"); A(f"s_lshl_b32 s{sZ}, s{sZ}, 19")
    P.append(W(lgkm=0))
    A(f"s_sub_u32 s{sQ}, s4, 96"); A(f"s_subb_u32 s{sQ+1}, s5, 0")
    P += stamp(cfg, 1, 3)
    qso = [f"s{sQo[0]}", "64", "32", "0"]
    def q_dma(tau):
        return [Op(sq(f"buffer_load_dwordx4 v{vQd}, {s4(sQ)}, {qso[n]} offen offset:{KIMM[n]} {cfg.qpol} lds"), tag=("Q", 0, tau, n)) for n in range(4)]
    q0 = q_dma(0)
    P.append(q0[0])
    A(f"s_and_b32 s{sM}, s{sU}, {1 if cfg.mask else 0}"); A(f"s_mul_i32 s{sM}, s{sM}, 0xa000")
    if cfg.mask2:
        A(f"s_bfe_u32 s{sX}, s{sU}, 0x10001"); A(f"s_mul_i32 s{sX}, s{sX}, {cfg.mask2}"); A(f"s_xor_b32 s{sM}, s{sM}, s{sX}")
    A(f"s_lshl_b32 s{sX}, s{sW}, 14")
    A(f"s_add_u32 s{sVm0[0]}, s{sX}, {VB}")
    P.append(q0[1])
    A(f"s_and_b32 s{sT}, s{sM}, 0xc000"); A(f"s_xor_b32 s{sX}, s{sX}, s{sT}")
    sF = sQo[2]
    if cfg.seqs and any(q[0] for q in cfg.seqs):
        A(f"s_bitcmp1_b32 s{sU}, 2"); A(f"s_cselect_b32 s{sF}, {cfg.seqs[1][0]}, {cfg.seqs[0][0]}")
        A(f"s_bitcmp1_b32 s{sU}, 1"); A(f"s_cselect_b32 s{sF}, s{sF}, 0")
        A(f"s_lshl_b32 s{sF}, s{sF}, 16"); A(f"s_add_u32 s{sF}, s{sF}, s{sZ}")
    else: sF = sZ
    A(f"s_add_u32 s{sX}, s{sX}, s{sF}")
    A(f"v_add_u32 v{vKdma}, s{sX}, v{vKdma}")
    P.append(q0[2])
    A(f"s_sub_u32 s{sK}, s6, {BIAS}"); A(f"s_subb_u32 s{sK+1}, s7, 0")
    A(f"s_add_u32 s{sK+2}, s{sZ}, {524288 + BIAS}"); A(f"s_mov_b32 s{sK+3}, 0x20000")
    P.append(q0[3])
    A(f"s_and_b32 s{sT}, s{sM}, 0x3000")
    for u in range(2):
        if u: A(f"s_add_u32 s{sKm0[u]}, s{sKm0[0]}, {u*4224}"); A(f"s_xor_b32 s{sT}, s{sT}, 0x1000")
        A(f"s_mov_b32 m0, s{sKm0[u]}")
        for j in range(4):
            A(f"s_add_u32 s{sKo(u,j)}, s{sT}, {BIAS - 32*j}")
            P.append(k_dma(cfg, u, j, 1))
    P += stamp(cfg, 2, 3)
    for u in (2, 3):
        A(f"s_xor_b32 s{sT}, s{sT}, {0x3000 if u == 2 else 0x1000}")
        A(f"s_add_u32 s{sKm0[u]}, s{sKm0[0]}, {u*4224}")
        for j in range(4): A(f"s_add_u32 s{sKo(u,j)}, s{sT}, {BIAS - 32*j}")
    A(f"s_and_b32 s{sQo[1]}, s{sW}, 1"); A(f"s_lshl_b32 s{sQo[1]}, s{sQo[1]}, 7"); A(f"s_sub_u32 s{sQo[1]}, s{sVm0[0]}, s{sQo[1]}")
    A(f"v_add_u32 v{vQd}, 0x4000, v{vQd}")
    def pack(q): return sum(((q[i + 1] - q[i]) & 15) << (4 * i) for i in range(7))
    if cfg.seqs:
        A(f"s_bitcmp1_b32 s{sU}, 2"); A(f"s_mov_b32 s{sTk}, {hex(pack(cfg.seqs[0]))}"); A(f"s_cselect_b32 s{sTk}, {hex(pack(cfg.seqs[1]))}, s{sTk}")
        A(f"s_bitcmp1_b32 s{sU}, 1"); A(f"s_cselect_b32 s{sTk}, s{sTk}, 0x1111111")
        A(f"s_mov_b32 s{sTv}, s{sTk}")
        P += nxt(sTv, sIv) + nxt(sTk, sIk) + nxt(sTk, 3)
    else:
        A(f"s_mov_b32 s{sIk}, 0x10000"); A(f"s_mov_b32 s{sIv}, s{sIk}"); A(f"s_mov_b32 s3, s{sIk}")
    def k_half(a, toff, needs=()):
        return [(sKm0[2*a + u] if j == 0 else None, k_dma(cfg, 2*a + u, j, toff, needs=needs)) for u in range(2) for j in range(4)]
    def m0op(m): return Op(m if isinstance(m, str) else f"s_mov_b32 m0, s{m}")
    def flat(dm):
        o = []
        for m, d in dm:
            if d is None: o.append(m); continue
            if m is not None: o += [m0op(m), Op("s_nop 0")]
            o.append(d)
        return o
    def qm0(tau): return f"s_add_u32 m0, s{sQo[1]}, {VW - (3 - tau) * 4224}"
    plan = dma_plan(cfg)
    krd = lambda a: [("Kr", 1, a, s) for s in range(8)]
    stream = k_half(1, 1) + [(Op(f"v_add_u32 v{vKdma}, s{sIk}, v{vKdma}"), None)]
    stream += [(qm0(1) if n == 0 else None, o) for n, o in enumerate(q_dma(1))] + [(Op(f"v_add_u32 v{vQd}, 0x4000, v{vQd}"), None)]
    stream += [(qm0(2) if n == 0 else None, o) for n, o in enumerate(q_dma(2))]
    stream += k_half(0, 2, krd(0)) + k_half(1, 2, krd(1)) + [(Op(f"v_add_u32 v{vKdma}, s3, v{vKdma}"), None)]
    stream += [(sVm0[p // 4] if p % 4 == 0 else None, v_dma(cfg, p, 1)) for p in range(min(7, 8 + cfg.drot))]
    late = [(sVm0[p // 4] if p % 4 == 0 or p == 7 else None, v_dma(cfg, p, 1)) for p in range(7, 8 + cfg.drot)]
    def take():
        x = [stream.pop(0)]
        while stream and stream[0][1] is None: x.append(stream.pop(0))
        return x
    U = []; B = lambda t: U.append(Op(t))
    B(f"v_lshrrev_b32 v{t0}, 3, v{vLane}")
    B(f"v_lshlrev_b32 v{t0}, 9, v{t0}")
    B(f"v_lshrrev_b32 v{t1}, 4, v{vLane}")
    B(f"v_and_b32 v{t2}, 7, v{vLane}")
    B(f"s_lshl_b32 s{sG}, s{sW}, 7")
    B(f"s_add_u32 s{sY}, s{sY}, s{sG}")
    B(f"v_lshl_add_u32 v{vOut}, v{t2}, 4, v{t0}")
    B(f"v_add_u32 v{vOut}, s{sY}, v{vOut}")
    B(f"v_lshlrev_b32 v{t1}, 1, v{t1}")
    B(f"v_xor_b32 v{t3}, v{t2}, v{t1}")
    B(f"v_lshl_add_u32 v{vVdma}, v{t3}, 4, v{t0}")
    B(f"s_add_u32 s{sX}, s{sG}, s{sF}")
    B(f"v_add_u32 v{vVdma}, s{sX}, v{vVdma}")
    B(f"v_bfe_u32 v{t0}, v{vLane}, 1, 3")
    B(f"v_mul_u32_u24 v{t0}, 1056, v{t0}")
    B(f"v_and_b32 v{t2}, 1, v{vLane}")
    B(f"v_lshl_add_u32 v{t0}, v{t2}, 9, v{t0}")
    B(f"v_lshrrev_b32 v{t1}, 4, v{vLane}")
    B(f"v_xor_b32 v{t2}, v{t2}, v{t1}")
    B(f"v_lshl_add_u32 v{t0}, v{t2}, 4, v{t0}")
    B(f"v_bfe_u32 v{t2}, v{vLane}, 3, 1")
    B(f"v_mul_u32_u24 v{t2}, {VW - 128 - 4224}, v{t2}")
    B(f"v_add_u32 v{vA}, {VB}, v{t0}")
    B(f"v_add_u32 v{vA}, v{vA}, v{t2}")
    B(f"v_add_u32 v{vB}, {PB}, v{t0}")
    B(f"v_add_u32 v{vKrd}, s{sKm0[0]}, v{t0}")
    B(f"v_and_b32 v{t0}, 15, v{vLane}")
    B(f"v_lshlrev_b32 v{t0}, 4, v{t0}")
    B(f"v_add_u32 v{vSr}, {SC0}, v{t0}")
    B(f"v_lshrrev_b32 v{t2}, 5, v{vLane}")
    B(f"v_lshl_add_u32 v{t2}, v{t2}, 8, v{vSr}")
    B(f"s_lshl_b32 s{sX}, s{sW}, 2")
    B(f"v_add_u32 v{vSx}, s{sX}, v{t2}")
    B(f"v_mov_b32 v{vFlagA}, {FLAG}")
    B(f"v_mov_b32 v{vFlag}, 0")
    B(f"ds_write_b32 v{vFlagA}, v{vFlag}")
    B(f"s_mov_b32 s{sC}, {hex(f2u(math.log2(math.e) / 16.0))}")
    B(f"s_mov_b32 s{sTh}, {hex(f2u(cfg.thresh))}")
    B(f"s_mov_b32 s{sT}, 0")
    for b in range(1, 4): B(f"s_add_u32 s{sVm0[b]}, s{sVm0[0]}, {b*4096}")
    B(f"s_sub_u32 s{sV}, s8, {BIAS}"); B(f"s_subb_u32 s{sV+1}, s9, 0"); B(f"s_mov_b32 s{sV+2}, s{sK+2}"); B(f"s_mov_b32 s{sV+3}, 0x20000")
    if cfg.mask2:
        for p in range(16):
            B(f"s_xor_b32 s{sX}, s{sM}, {p*4096}"); B(f"s_add_u32 s{sVo(p)}, s{sX}, {BIAS - (p%4)*1024}")
    else:
        for hi in range(4):
            base = (hi >> 1) * 8 + (hi & 1) * 2
            B(f"s_xor_b32 s{sX}, s{sM}, {base*4096}")
            for lo in (0, 1, 4, 5):
                p = base + lo
                B(f"s_add_u32 s{sVo(p)}, s{sX}, {lo*4096 + BIAS - (p%4)*1024}")
    B(f"s_mov_b32 s{sO}, s10"); B(f"s_mov_b32 s{sO+1}, s11"); B(f"s_mov_b32 s{sO+2}, 12582912"); B(f"s_mov_b32 s{sO+3}, 0x20000")
    B(f"v_lshrrev_b32 v{t0}, 2, v{vLane}")
    B(f"v_lshlrev_b32 v{t0}, 7, v{t0}")
    B(f"v_bfe_u32 v{t2}, v{vLane}, 3, 2")
    B(f"v_lshl_add_u32 v{t0}, v{t2}, 5, v{t0}")
    B(f"v_and_b32 v{t2}, 3, v{vLane}")
    B(f"v_lshl_add_u32 v{t0}, v{t2}, 3, v{t0}")
    B(f"v_add_u32 v{vVrd[0]}, s{sVm0[0]}, v{t0}")
    for dt in range(1, 4): B(f"v_xor_b32 v{vVrd[dt]}, {dt*32}, v{vVrd[0]}")
    B(f"v_lshlrev_b32 v{t0}, 4, v{vLane}")
    B(f"v_add_u32 v{vPrd}, {PB}, v{t0}")
    B(f"s_mul_i32 s{sX}, s{sW}, 6144")
    B(f"v_add_u32 v{vPwr}, s{sX}, v{vPrd}")
    for i in range(96): B(f"v_mov_b32 v{i}, 0")
    for r in range(6): B(f"v_mov_b32 v{vL[r]}, 0")
    nz = len(U) // max(cfg.npre, 1) + 1
    k = 0
    for i in range(cfg.npre):
        e = min(len(U), (i + 1) * nz)
        while e < len(U) and U[e].text.startswith("s_subb"): e += 1
        P += U[k:e]; k = e
        P += flat(take())
    P += U[k:]
    P.append(W(lgkm=0))
    P += stamp(cfg, 4, 3)
    def q_read(r, s):
        tau, a = divmod(r, 2)
        base, off = (vB, a * 8448) if tau == 0 else (vA, 2 * a * VW + VW - (3 - tau) * 4224)
        return Op(f"ds_read_b128 {a4(aQ(r,s))}, v{base} offset:{off + s*64}", tag=("Qr", 0, r, s))
    def gather_max(tau):
        rd = [gather_reads(2*tau + k, X0 + 4 + 4*k, 0, "Mr") for k in range(2)]
        red = []
        for i in range(2):
            for k in range(2):
                b = X0 + 4 + 4 * k; r = 2 * tau + k
                if i == 0: red.append(Op(f"v_max3_f32 v{b}, v{b}, v{b+1}, v{b+2}", needs=[("Mr", 0, r)]))
                else: red.append(Op(f"v_max_f32 v{vMc[r]}, v{b}, v{b+3}"))
        return rd, red
    m0r, m1r, m2r = X0, X0 + 1, X0 + 2
    for tau in range(3):
        A("s_barrier", needs=[("Q", 0, tau, n) for n in range(4)] + ([("Mw", 0, tau - 1)] + [("Qr", 0, 2*tau - 2 + k, s) for k in range(2) for s in range(8)] if tau else []))
        if tau == 0: P += stamp(cfg, 1)
        P += stamp(cfg, 1 + 2 * tau, 1)
        if tau < 2: P += stamp(cfg, 5 + tau, 3)
        G = Gaps(33)
        order = [(2*tau + k, a, s) for a in range(2) for k in range(2) for s in range(8)]
        rds = []
        for u, (r, a, s) in enumerate(order):
            if tau == 0 and r == 0: rds.append((u, k_read(a, s, 1)))
            if a == 0: rds.append((u, q_read(r, s)))
        LA = 8 if cfg.pfree else 6
        inl = tau and (tau - 1) not in cfg.early
        if inl:
            rd, red = gather_max(tau - 1)
            P += rd
        P += [o for u, o in rds if u < LA]
        if inl: P += red
        for g in cfg.pgs:
            if not stream: break
            x = take()
            m, o = x[0]
            if m is not None: G.put_first(g - 1, m0op(m))
            G.put_mem(g, o)
            for y, _ in x[1:]: G.val[g].append(y)
        gi = 0
        for u, o in rds:
            if u < LA: continue
            while G.cost(gi) >= 8: gi += 1
            assert gi <= u - LA + 2, (tau, u, gi)
            G.put_mem(gi, o)
        tasks = []
        if cfg.pfree:
            for g0 in range(3, 24 if tau == 0 else 16, 4):
                G.put_first(g0, Need([o.tag for u, o in rds if g0 < u <= g0 + 4]), g0 - 1)
        if tau:
            la = {}
            if inl:
                qs = [(a, 2*tau - 2 + k) for k in range(2) for a in range(2)]
                tasks, la = softmax_tasks(qs, [0] * 4, {2*tau - 2: 0, 2*tau - 1: 2})
            if tau == 2:
                c1 = Task(Op(f"v_max3_f32 v{X0+12}, v{vTs[0]}, v{vTs[1]}, v{vTs[2]}"), [la[2]] if la else [], 0, 900)
                c2 = Task(Op(f"v_max_f32 v{X0+12}, v{X0+12}, v{vTs[3]}"), [c1] + ([la[3]] if la else []), 0, 901)
                c3 = Task(Op(f"v_cmp_nge_f32 vcc, s{sTh}, v{X0+12}"), [c2], 0, 902)
                tasks += [c1, c2, c3]
        mx = []
        for k, m in enumerate((m0r, m1r)):
            b = vS(0, 2*tau + k)
            x = Task(Op(f"v_max3_f32 v{m}, v{b}, v{b+1}, v{b+2}"), [], 8 * k + 11, -20 + k)
            y = Task(Op(f"v_max_f32 v{m}, v{m}, v{b+3}"), [x], 0, -18 + k)
            mx += [x, y]
        tailops = []
        st = red_pair(m0r, m1r, m2r, "v_max_f32")
        fin = [st[0][0], st[1][0], st[2][0], st[3][0], st[4][0], Op(f"v_mul_f32 v{m0r}, s{sC}, v{m0r}")]
        mw = Op(f"ds_write_b32 v{vSx}, v{m0r} offset:{tau*512}", tag=("Mw", 0, tau), cost=8)
        if tau < 2:
            prev = [mx[1], mx[3]]
            for i, o in enumerate(fin):
                t = Task(o, prev, [22, 23, 24, 26, 27, 28][i], -10 + i); mx.append(t); prev = [t]
        else:
            b = vS(1, 4)
            x = Task(Op(f"v_max3_f32 v{m0r}, v{m0r}, v{b}, v{b+1}"), [mx[1]], 27, -10)
            y = Task(Op(f"v_max3_f32 v{m0r}, v{m0r}, v{b+2}, v{b+3}"), [x], 27, -9)
            mx += [x, y]
            b = vS(1, 5)
            tailops = [Op(f"v_max3_f32 v{m1r}, v{m1r}, v{b}, v{b+1}"), Op(f"v_max3_f32 v{m1r}, v{m1r}, v{b+2}, v{b+3}"), Op("s_nop 1"),
                       fin[0], fin[1], fin[2], Op("s_nop 1"), fin[3], fin[4], fin[5], mw]
        G.cap = cfg.pcap
        G.schedule(tasks + mx, 32)
        if tau < 2: G.put_mem(mx[-1].gap + 1, mw)
        for u, (r, a, s) in enumerate(order):
            needs = ([("Kr", 1, a, s)] if tau == 0 and r == 0 else []) + ([("Qr", 0, r, s)] if a == 0 else [])
            A(mfma(v4(vS(a, r)), a4(SETS[a] + 4*s), a4(aQ(r, s)), "0" if s == 0 else v4(vS(a, r))), needs=needs)
            P += G.ops(u)
        P += stamp(cfg, 2 + 2 * tau, 1)
        if tau == 2:
            if cfg.klate: A("s_nop 7")
            else:
                for s in range(8): P.append(k_read(0, s, 2))
        P += G.ops(32)
        P += tailops
        if tau in cfg.early:
            A("s_barrier", needs=[("Mw", 0, tau)])
            rd, red = gather_max(tau)
            tk, _ = softmax_tasks([(a, 2*tau + k) for a in range(2) for k in range(2)], [0] * 4, {2*tau: 0, 2*tau + 1: 1})
            P += rd + red + linear(tk)
    A("s_cbranch_vccnz L_notify0")
    A("L_notified0:")
    P += stamp(cfg, 2)
    A("s_barrier", needs=[("Mw", 0, 2)] + [("Qr", 0, 4 + k, s) for k in range(2) for s in range(8)])
    rd, red = gather_max(2)
    P += rd
    A(f"ds_read_b32 v{vFlag}, v{vFlagA}", tag=("F", 0))
    tasks, _ = softmax_tasks([(a, 4 + k) for k in range(2) for a in range(2)], [0] * 4, {4: 0, 5: 2})
    st = red + [Op(f"v_cmp_ne_u32 vcc, 0, v{vFlag}", needs=[("F", 0)])] + linear(tasks)
    stream += late
    nd = len([x for x in stream if x[1] is not None])
    keep = st[-16:] if cfg.klate else []
    if cfg.klate: st = st[:-16]
    n = len(st) // max(nd, 1) + 1
    for i in range(nd):
        P += flat(take()) + st[i * n:(i + 1) * n]
    if not nd: P += st
    if cfg.klate:
        for s in range(8): P.append(k_read(0, s, 2))
    P += keep
    P.append(W(lgkm=0))
    A("s_cbranch_vccnz L_slow")
    P += stamp(cfg, 3)

    Lp = [Op(".p2align 6"), Op("L_loop:")] + body(cfg)
    if cfg.lstamps:
        Lp.append(Op("s_waitcnt lgkmcnt(0)", "salu"))
        Lp.append(Op(f"s_cmp_lg_u32 s{sT}, {cfg.lt + 1}"))
        Lp.append(Op("s_cbranch_scc1 L_nocopy"))
        for i in range(7):
            src = LST[i]
            Lp.append(Op(f"v_writelane_b32 v{vDbg}, s{src}, {i}"))
        Lp.append(Op("L_nocopy:"))
        Lp.append(Op(f"s_cmp_lt_u32 s{sT}, 6"))
    Lp += [Op("s_cbranch_vccnz L_slow"), Op("L_slow_ret:"), Op("s_cbranch_scc1 L_loop")]
    Lx = [Op(f"s_cmp_eq_u32 s{sT}, 6"), Op("s_cbranch_scc1 L_switch")]
    Sw = [Op("L_switch:"), Op(f"s_mov_b32 s{sK}, s{sV}"), Op(f"s_mov_b32 s{sK+1}, s{sV+1}"), Op(f"v_add_u32 v{vKdma}, s{sIv}, v{vVdma}")]
    Sw.append(Op(f"s_mov_b32 s{sIv}, 0x40000000"))
    sPb = [None, 79, 80, 81]
    vF0 = [X0 + 13, X0 + 14, X0 + 15, vA]
    Sw.append(Op(f"s_sub_u32 s{sX}, s{sKm0[0]}, s{sVm0[0]}"))
    Sw.append(Op(f"v_lshrrev_b32 v{vB}, 5, v{vLane}"))
    Sw.append(Op(f"v_lshl_add_u32 v{vB}, v{vB}, 5, s{sX}"))
    for u in range(4):
        Sw += [Op(f"s_add_u32 s{sY}, s{sW}, {u}"), Op(f"s_and_b32 s{sY}, s{sY}, 3")]
        if u: Sw.append(Op(f"s_mul_i32 s{sPb[u]}, s{sY}, 6144"))
        Sw += [Op(f"s_lshl_b32 s{sY}, s{sY}, 14"), Op(f"s_xor_b32 s{sY}, s{sY}, s{sM}")]
        for j in range(4):
            if cfg.mask2 or j == 2: Sw.append(Op(f"s_xor_b32 s{sX}, s{sY}, {j*4096}"))
            lo_ = 0 if cfg.mask2 else (j % 2) * 4096
            Sw.append(Op(f"s_add_u32 s{sKo(u,j)}, s{sX if (cfg.mask2 or j >= 2) else sY}, {lo_ + BIAS - 1056*j}"))
        Sw.append(Op(f"v_add_u32 v{vF0[u]}, v{vVrd[u]}, v{vB}"))
    Sw.append(Op("s_branch L_loop"))

    F = []; A = lambda t, **k: F.append(Op(t, **k))
    F += stamp(cfg, 4) + stamp(cfg, 1, 2)
    vOw, vOr = vKdma, vVdma
    vPa = lambda i: vS(0, 3) + 12 + i
    allK = [("K", 1, u, j) for u in range(4) for j in range(4)]
    def fv_read(i, dt, half):
        return Op(f"ds_read_b64_tr_b16 {a4(fV(i, dt) + 2*half, 2)}, v{vF0[dt]} offset:{i*4224 + half*2112}", tag=("Vr", 0, i, dt, half),
                  needs=[("K", 1, i, 2*half), ("K", 1, i, 2*half + 1)])
    def fp_read(i, r):
        return Op(f"ds_read_b128 {a4(fP(i, r))}, v{vPa(i)} offset:{r*1024}", tag=("Pr", 0, i, r))
    order = [(r, dt, 0) for dt in range(4) for r in range(6)]
    order += [(r, dt, i) for r in range(6) for dt in range(4) for i in (1, 2, 3)]
    NG = 96 + 40
    G = Gaps(NG)
    F += [fv_read(0, dt, h) for dt in range(4) for h in range(2)]
    for i in (1, 2, 3): A(f"v_add_u32 v{vPa(i)}, s{sPb[i]}, v{vPrd}")
    G.put_first(0, Need(allK[:8]))
    lo, lw = l_publish()
    F += lo[:6]
    FB = cfg.fbar
    for r in range(6): G.put_mem(cfg.fpw[r], p_write(r, 0))
    gl = [g for g in range(FB) if g not in cfg.fpw]
    for k in range(5):
        G.val[gl[k]] += lo[6 + 3 * k:9 + 3 * k]
    for k, o in enumerate(lw): G.put_mem(gl[5 + k], o)
    pub = [("Pw", 0, r) for r in range(6)] + [("Lw", 0, tau) for tau in range(3)]
    G.put_first(FB, Need(pub))
    G.put_mem(FB, Op("s_barrier", needs=pub))
    firstuse = {}
    for u, (r, dt, i) in enumerate(order):
        firstuse.setdefault(("Pr", 0, i, r), u)
        for h in range(2): firstuse.setdefault(("Vr", 0, i, dt, h), u)
    prs = [fp_read(i, r) for r in range(6) for i in (1, 2, 3)]
    lrs = [gather_reads(r, vS(0, 0) + 4*r, SC1 - SC0, "Lr") for r in range(6)]
    for k, o in enumerate(prs[:3] + lrs[:1]): G.put_mem(FB + (k + 1) // 2, o); o.gap = FB + (k + 1) // 2
    vr = sorted([fv_read(i, dt, h) for i in (1, 2, 3) for dt in range(4) for h in range(2)], key=lambda o: (o.tag[2] >= 2, firstuse[o.tag]))
    gi = 0; late_ = False
    for o in vr:
        while len(G.mem[gi]) >= 2 or any(x.kind in ("dsw", "bar") for x in G.mem[gi]): gi += 1
        if o.tag[2] >= 2 and not late_:
            late_ = True
            gi = max(gi, cfg.flate)
            while len(G.mem[gi]) >= 1: gi += 1
            G.put_first(gi, Need(allK[8:]))
        assert gi <= firstuse[o.tag] - 4, (gi, o.tag)
        G.put_mem(gi, o)
    for r, o in enumerate(lrs): firstuse[o.tag] = 24 + 12 * r + 2
    rest = sorted(prs[3:] + lrs[1:], key=lambda o: firstuse[o.tag])
    gi = FB + 3
    for o in rest:
        g = max(gi, firstuse[o.tag] - 11)
        while G.cost(g) >= 4: g += 1
        G.put_mem(g, o); gi = g; o.gap = g
    for r in range(6): G.put_first(24 + 12 * r - 1, Need([("Pr", 0, i, r) for i in (1, 2, 3)]))
    setup = [f"v_and_b32 v{t0}, 15, v{vLane}", f"v_lshrrev_b32 v{t1}, 4, v{vLane}", f"v_mul_u32_u24 v{t0}, {OST}, v{t0}",
             f"v_lshrrev_b32 v{t2}, 3, v{vLane}", f"v_lshl_add_u32 v{t0}, v{t1}, 3, v{t0}", f"v_mul_u32_u24 v{t2}, {OST}, v{t2}",
             f"v_add_u32 v{vOw}, s{sVm0[0]}, v{t0}", f"v_and_b32 v{t1}, 7, v{vLane}", f"v_lshl_add_u32 v{t2}, v{t1}, 4, v{t2}",
             f"v_add_u32 v{vOr}, s{sVm0[0]}, v{t2}"]
    for k, x in enumerate(setup): G.val[FB - 3 + k].append(Op(x))
    tasks = []
    for k in range(12): G.put_first(25 + 2 * k, Op(f"s_mov_b32 s{sKo(0,0) + k}, {k * 4096}"), 24 + 2 * k)
    rc = []
    for r in range(6):
        b = vS(0, 0) + 4 * r; lg = lrs[r].gap + 5; pr = 100 + (24 + 12 * r) * 10 - 60
        x = Task(Op(f"v_add_f32 v{b}, v{b}, v{b+1}", needs=[("Lr", 0, r)]), [], lg, pr)
        y = Task(Op(f"v_add_f32 v{b+2}, v{b+2}, v{b+3}", needs=[("Lr", 0, r)]), [], lg, pr + 1)
        z = Task(Op(f"v_add_f32 v{b}, v{b}, v{b+2}"), [x, y], lg, pr + 2)
        w = Task(Op(f"v_rcp_f32 v{b if cfg.pkm else vL[r]}, v{b}"), [z], lg, pr + 3)
        tasks += [x, y, z, w]; rc.append(w)
    lastuse = {}
    for u, (r, dt, beta) in enumerate(order): lastuse[(r, dt)] = u
    memops = []
    if cfg.pkm:
        for r in range(6):
            u = max(lastuse[(r, dt)] for dt in range(4)); e = u + 3
            if e > 95: e = 97
            rb_ = vS(0, 0) + 4 * r
            batch = Task(Op("s_nop 0", cost=4), [rc[r]], e, 100 + u * 10)
            batch.pk8 = [Op(f"v_pk_mul_f32 {v4(vO(0, r) + 2*i, 2)}, {v4(vO(0, r) + 2*i, 2)}, {v4(rb_, 2)} op_sel_hi:[1,0]") for i in range(8)]
            tasks.append(batch)
            for dt in range(4):
                b = vO(dt, r)
                cv = [Task(Op(f"v_cvt_pk_bf16_f32 v{b+i}, v{b+2*i}, v{b+2*i+1}"), [batch], e, 100 + u * 10 + 1 + 2 * dt + i) for i in range(2)]
                cv[1].deps.append(cv[0])
                tasks += cv
                memops.append((r, dt, cv))
    else:
        for (r, dt), u in sorted(lastuse.items(), key=lambda x: x[1]):
            b = vO(dt, r); e = u + 3
            if e > 95: e = 97
            mu = [Task(Op(f"v_mul_f32 v{b+i}, v{b+i}, v{vL[r]}"), [rc[r]], e, 100 + u * 10 + i) for i in range(4)]
            cv = [Task(Op(f"v_cvt_pk_bf16_f32 v{b+i}, v{b+2*i}, v{b+2*i+1}"), mu[:2*i+2], e, 100 + u * 10 + 14 + i) for i in range(2)]
            cv[1].deps.append(cv[0])
            tasks += mu + cv
            memops.append((r, dt, cv))
    G.cap = cfg.fcap
    G.schedule(tasks, NG - 1, NG)
    for t in tasks:
        if hasattr(t, "pk8"):
            G.val[t.gap].remove(t.op); G.tail[t.gap] += t.pk8
    allV = [("V", 0, p) for p in range(8 + cfg.drot)]
    lastw = {}
    for r, dt, cv in memops:
        g = cv[1].gap + 1
        G.put_mem(g, Op(f"ds_write_b64 v{vOw}, {v4(vO(dt, r), 2)} offset:{r*16*OST + dt*32}", tag=("Ow", 0, r, dt), needs=allV, cost=12))
        lastw[r] = max(lastw.get(r, 0), g)
    for r in range(6):
        g = lastw[r] + 1
        rb = vPf(0, 0) + 8 * (r % 3)
        for i in range(2):
            G.put_mem(g, Op(f"ds_read_b128 {v4(rb + 4*i)}, v{vOr} offset:{(r*16 + 8*i)*OST}", tag=("Or", 0, r, i)))
            G.put_mem(min(g + 5 + i, G.n - 1), Op(sq(f"buffer_store_dwordx4 {v4(rb + 4*i)}, v{vOut}, {s4(sO)}, s{sKo(0,0) + r*2 + i} offen {cfg.opol}"), needs=[("Or", 0, r, i)]))
    for u, (r, dt, beta) in enumerate(order):
        A(mfma(v4(vO(dt, r)), a4(fV(beta, dt)), a4(fP(beta, r)) if beta else v4(vPk(r)), v4(vO(dt, r))),
          needs=([("Pr", 0, beta, r)] if beta else []) + [("Vr", 0, beta, dt, 0), ("Vr", 0, beta, dt, 1)])
        if u in (0, 24, 48): F += stamp(cfg, {0: 2, 24: 3, 48: 4}[u], 2)
        F += G.ops(u)
    F += stamp(cfg, 5, 2)
    F += G.ops(96)
    A("s_nop 7")
    for g in range(97, G.n): F += G.ops(g)
    if cfg.verbose: print("final costs", [G.cost(g) for g in range(G.n)], file=sys.stderr)
    if cfg.stamps:
        F += stamp(cfg, 5) + stamp(cfg, 6, 2)
        F.append(W(vm=0))
        F += stamp(cfg, 6)
        A("s_memrealtime s[6:7]")
        F.append(W(lgkm=0))
        A(f"s_mov_b32 s{sWS+2}, {256 if cfg.dbg else 0x1000000}"); A(f"s_mov_b32 s{sWS+3}, 0x20000")
        A("v_mov_b32 v0, s34"); A("v_mov_b32 v1, s6")
        if cfg.lstamps:
            for i in range(7): A(f"v_readlane_b32 s{sSt + 2*i}, v{vDbg}, {i}")
            A("s_nop 3")
        for i in range(1, 7):
            A(f"s_sub_u32 s{sX}, s{sSt+2*i}, s{sSt}")
            A(f"v_mov_b32 v{1+i}, s{sX}")
        if cfg.dbg:
            A(f"s_mov_b32 s{sX}, 4096"); A("s_cmp_eq_u32 s2, 0"); A(f"s_cselect_b32 s{sX}, 0, s{sX}")
            A("s_cmp_eq_u32 s2, 200"); A(f"s_cselect_b32 s{sX}, 32, s{sX}")
            A(f"s_lshl_b32 s{sY}, s{sW}, 12"); A(f"s_add_u32 s{sX}, s{sX}, s{sY}")
        else:
            A(f"s_lshl_b32 s{sX}, s2, 7"); A(f"s_lshl_b32 s{sY}, s{sW}, 5"); A(f"s_add_u32 s{sX}, s{sX}, s{sY}")
        A(f"v_mov_b32 v8, s{sX}")
        A(f"v_cmp_eq_u32 vcc, 0, v{vLane}")
        A("s_and_saveexec_b64 s[4:5], vcc")
        A(f"buffer_store_dwordx4 v[0:3], v8, {s4(sWS)}, 0 offen")
        A(f"buffer_store_dwordx4 v[4:7], v8, {s4(sWS)}, 0 offen offset:16")
    A("L_end:")
    A("s_endpgm")

    def notify(sfx):
        return [Op(f"L_notify{sfx}:"), Op(f"v_mov_b32 v{vFlag}, 1"), Op(f"ds_write_b32 v{vFlagA}, v{vFlag}"), W(lgkm=0), Op(f"s_branch L_notified{sfx}")]
    def strip(ops):
        for o in ops: o.needs = []; o.tag = None
        return ops
    S = [Op("L_slow:"), W(lgkm=0), Op("s_barrier"), Op("s_nop 7")]
    for tau in range(3): S += strip(max_local(tau, False, X0))
    S += [W(lgkm=0), Op("s_barrier")]
    S.append(Op(f"v_mov_b32 v{vFlag}, 0"))
    S.append(Op(f"ds_write_b32 v{vFlagA}, v{vFlag}"))
    gb = vPf(0, 0)
    for r in range(6): S += strip([gather_reads(r, gb + 4*r, 0, "Mr")])
    S.append(W(lgkm=0))
    for r in range(6): S.append(Op(f"v_max3_f32 v{gb+4*r}, v{gb+4*r}, v{gb+4*r+1}, v{gb+4*r+2}"))
    for r in range(6): S.append(Op(f"v_max3_f32 v{gb+4*r}, v{gb+4*r}, v{gb+4*r+3}, v{vMc[r]}"))
    for r in range(6): S.append(Op(f"v_sub_f32 v{X0+r}, v{vMc[r]}, v{gb+4*r}"))
    for r in range(6): S.append(Op(f"v_exp_f32 v{X0+r}, v{X0+r}"))
    for r in range(6): S.append(Op(f"v_mov_b32 v{vMc[r]}, v{gb+4*r}"))
    for r in range(6): S.append(Op(f"v_mul_f32 v{vL[r]}, v{vL[r]}, v{X0+r}"))
    for r in range(6):
        for dt in range(4):
            for i in range(4): S.append(Op(f"v_mul_f32 v{vO(dt,r)+i}, v{vO(dt,r)+i}, v{X0+r}"))
    tasks, _ = softmax_tasks([(a, r) for r in range(6) for a in range(2)], [0] * 12, {r: 2 * r for r in range(6)})
    S += linear(tasks)
    S += [Op(f"s_cmp_lt_u32 s{sT}, 6"), Op("s_branch L_slow_ret")]

    trace = [(o, -1) for o in P]
    for t in range(7): trace += [(o, t) for o in Lp]
    trace += [(o, 7) for o in F]
    derive_waits(trace)
    errs = check_hazards(P + Lp + Lp + Lx + Sw + Lp + Lx + F) + check_hazards(Lp + S + Lp) + check_hazards(Lp + S + Lx + F) + check_hazards(P + S + Lp)
    for e in sorted(set(errs)): print("HAZARD", e, file=sys.stderr)
    assert not errs
    if cfg.abl:
        def keep(o):
            t = o.tag[0] if o.tag else None
            drop = (("p" in cfg.abl and t == "Pr") or ("v" in cfg.abl and t == "Vr") or ("k" in cfg.abl and t == "Kr") or ("w" in cfg.abl and t == "Pw")
                    or ("s" in cfg.abl and o.text.split()[0] in ("v_fma_f32", "v_exp_f32", "v_cvt_pk_bf16_f32", "v_add_f32"))
                    or ("e" in cfg.abl and o.text.split()[0] == "v_exp_f32")
                    or ("d" in cfg.abl and o.kind == "dma") or ("h" in cfg.abl and t == "V") or ("b" in cfg.abl and o.kind == "bar")
                    or ("q" in cfg.abl and t == "Pr" and o.tag[2] == 3))
            if drop and o.wait:
                o.kind = "pseudo"; return True
            return not drop
        Lp = [o for o in Lp if keep(o)]
    hdr = [l for l in open("standalone__gqa_softmax__near_ridge.s.ref").read().splitlines() if l.startswith(";") and "@launch grid" not in l] if cfg.refhdr else []
    if cfg.refhdr:
        hdr += DOC.strip("\n").split("\n")
    L = header(256, 256, LDS_TOTAL, hdr)
    L += emit(P) + emit(Lp) + emit(Lx) + emit(F) + emit(Sw) + ["L_code_end:"] + emit(notify("")) + emit(notify("0")) + emit(S)
    L += footer(512, 256)
    return "\n".join(L) + "\n"

if __name__ == "__main__":
    cfg = Cfg()
    out = sys.argv[1]
    for a in sys.argv[2:]:
        k, v = a.split("=", 1)
        if not isinstance(getattr(Cfg, k), str): v = eval(v)
        setattr(cfg, k, v)
    text = build(cfg)
    open(out, "w").write(text)
```
